```python
import torch

def _softmax(x, axis=-1):
    return torch.softmax(x, dim=axis)
def _gelu(x):
    return torch.nn.functional.gelu(x, approximate="tanh")
def _silu(x):
    return torch.nn.functional.silu(x)
def _sigmoid(x):
    return torch.sigmoid(x)
def _layernorm(x, axis=-1, eps=1e-5):
    m = x.mean(dim=axis, keepdim=True)
    v = x.var(dim=axis, keepdim=True, unbiased=False)
    return (x - m) / torch.sqrt(v + eps)
def _scatter_add(tgt, idx, src, axis=0):
    return tgt.clone().index_add_(axis, idx, src)
def _segment_sum(src, seg, n):
    out = torch.zeros((n,) + src.shape[1:], dtype=src.dtype)
    return out.index_add_(0, seg, src)
def _pad(x, pw):
    flat = tuple(v for pair in reversed(pw) for v in pair)
    return torch.nn.functional.pad(x, flat)

kernel_name = 'standalone__detection_seg_fpn_lateral__vision'

def setup_inputs():

    _w = (lambda a: (lambda t: t.to(torch.bfloat16) if t.is_floating_point() else t)(torch.as_tensor(a)))
    H = W = (224 // 2) * 2
    C = 96
    k = 5
    return {
        "c_fine": _w((lambda *s: torch.randn(*s, dtype=torch.bfloat16) * 0.05)(1, H, W, C)),
        "p_coarse": _w((lambda *s: torch.randn(*s, dtype=torch.bfloat16) * 0.05)(1, H // 2, W // 2, C)),
        "w_lat": _w((lambda *s: torch.randn(*s, dtype=torch.bfloat16) * 0.05)(C, C)),
        "w_out": _w((lambda *s: torch.randn(*s, dtype=torch.bfloat16) * 0.05)(k, k, C, C)),
    }

def reference(c_fine, p_coarse, w_lat, w_out):
    B, H, W, C = c_fine.shape
    k = 5
    lat = torch.einsum("bhwc,cd->bhwd", c_fine, w_lat)
    up = (lambda x, n, axis: torch.repeat_interleave(x, n, dim=axis))((lambda x, n, axis: torch.repeat_interleave(x, n, dim=axis))(p_coarse, 2, axis=1), 2, axis=2)
    m = lat + up
    pad = k // 2
    mp = _pad(m, ((0, 0), (pad, pad), (pad, pad), (0, 0)))
    o = None
    for di in range(k):
        for dj in range(k):
            t = torch.einsum("bhwc,cd->bhwd", mp[:, di:di + H, dj:dj + W, :], w_out[di, dj])
            o = t if o is None else o + t
    return o
```

```python
import sys
KN = "standalone__detection_seg_fpn_lateral__vision_kernel"
HDR = open("standalone__detection_seg_fpn_lateral__vision.s.ref").read().split("; Override")[0]

def gen(scale=None):
    L = []; A = L.append
    PL = 2560; WB = 12 * PL
    A(HDR.rstrip())
    A(f"; @launch grid=(784,1,1) block=(256,1,1) lds={WB+18432}")
    A(f'.amdgcn_target "amdgcn-amd-amdhsa--gfx950"\n.text\n.globl {KN}\n.p2align 8\n.type {KN},@function\n{KN}:')
    A("s_cmp_ge_u32 s2, 784\ns_cbranch_scc1 L_end")
    A("s_load_dwordx8 s[36:43], s[0:1], 0\ns_load_dwordx2 s[44:45], s[0:1], 32")
    A("v_lshrrev_b32 v1, 6, v0\nv_and_b32 v0, 63, v0\ns_nop 0\nv_readfirstlane_b32 s3, v1")
    A(f"s_mul_hi_u32 s24, s2, {(2**32+13)//14}\ns_mul_i32 s25, s24, 14\ns_sub_u32 s25, s2, s25")
    A("s_lshl_b32 s24, s24, 2\ns_lshl_b32 s25, s25, 4")
    A("s_waitcnt lgkmcnt(0)")
    for r, p, n in ((4, 36, 9633792), (8, 38, 2408448), (12, 40, 18432), (16, 42, 460800), (20, 44, 9633792)):
        A(f"s_mov_b32 s{r}, s{p}\ns_mov_b32 s{r+1}, s{p+1}\ns_mov_b32 s{r+2}, {n}\ns_mov_b32 s{r+3}, 0x20000")
    A("v_and_b32 v2, 15, v0\nv_lshrrev_b32 v3, 4, v0")
    for n in range(5):
        A(f"s_add_u32 s26, s3, {4*n}\ns_lshl_b32 s26, s26, 10\nv_lshl_add_u32 v9, v0, 4, s26")
        A(f"v_lshrrev_b32 v10, 8, v9\nv_mul_u32_u24 v10, 21846, v10\nv_lshrrev_b32 v10, 16, v10\nv_and_b32 v10, 1, v10\nv_lshlrev_b32 v10, 5, v10\nv_xor_b32 v{4+n}, v9, v10")
    def dma(srd, soff):
        for n in range(5):
            if n == 4: A("s_cmp_ge_u32 s3, 2\ns_cbranch_scc1 Ls%d" % len(L)); lab = "Ls%d" % (len(L) - 1)
            A(f"s_add_u32 s26, s3, {4*n}\ns_lshl_b32 s26, s26, 10\ns_add_u32 m0, s26, {WB}\ns_nop 0")
            A(f"buffer_load_dwordx4 v{4+n}, s[{srd}:{srd+3}], {soff} offen lds")
            if n == 4: A(lab + ":")
    dma(12, "0")
    A("v_bfe_u32 v9, v0, 2, 2\nv_and_b32 v10, 3, v0\nv_lshlrev_b32 v10, 3, v10")
    A("v_lshl_add_u32 v14, v3, 3, v9\nv_mul_u32_u24 v14, 192, v14\nv_add_u32 v11, v14, v10")
    A("v_lshl_add_u32 v14, v3, 2, v9\nv_mul_u32_u24 v14, 192, v14\nv_add_u32 v14, v14, v10")
    A("v_and_b32 v15, 1, v3\nv_lshlrev_b32 v15, 5, v15\nv_add_u32 v12, v14, v15\nv_sub_u32 v13, v14, v15")
    A("v_lshrrev_b32 v9, 3, v2\nv_and_b32 v10, 1, v2\nv_lshlrev_b32 v10, 4, v10\nv_mov_b32 v14, 0x3f80\nv_lshlrev_b32 v14, v10, v14\nv_bfe_u32 v10, v2, 1, 2")
    for h in range(2):
        for d in range(4):
            A(f"v_add_u32 v15, {2*h}, v9\nv_cmp_eq_u32 s[28:29], v15, v3\nv_cmp_eq_u32 vcc, {d}, v10\ns_nop 1\ns_and_b64 vcc, vcc, s[28:29]\ns_nop 1\nv_cndmask_b32 v{16+4*h+d}, 0, v14, vcc")
    A("s_waitcnt vmcnt(0)\ns_barrier")
    WL = 64
    for j in range(6):
        for kc in range(3):
            for h in range(2):
                r = WL + (j*3+kc)*4 + 2*h
                A(f"ds_read_b64_tr_b16 v[{r}:{r+1}], v11 offset:{WB + (32*kc+4*h)*192 + (j^h)*32}")
    for n in range(3):
        if n == 2: A("s_cmp_ge_u32 s3, 2\ns_cbranch_scc1 L_latdone")
        A(f"s_add_u32 s26, s3, {4*n}\ns_lshl_b32 s26, s26, 4\nv_add_u32 v24, s26, v2")
        A("v_mul_u32_u24 v25, 3277, v24\nv_lshrrev_b32 v25, 16, v25\nv_mul_u32_u24 v26, 20, v25\nv_sub_u32 v26, v24, v26")
        A("s_sub_u32 s26, s24, 2\ns_sub_u32 s27, s25, 2\nv_add_u32 v25, s26, v25\nv_add_u32 v26, s27, v26")
        A("v_mov_b32 v29, 224\nv_cmp_lt_u32 s[28:29], v25, v29\nv_cmp_lt_u32 vcc, v26, v29\ns_nop 1\ns_and_b64 vcc, vcc, s[28:29]")
        A("v_mul_u32_u24 v27, 224, v25\nv_add_u32 v27, v27, v26\nv_mul_u32_u24 v27, 192, v27\nv_lshl_add_u32 v27, v3, 4, v27")
        A("v_lshrrev_b32 v25, 1, v25\nv_lshrrev_b32 v26, 1, v26\nv_mul_u32_u24 v28, 112, v25\nv_add_u32 v28, v28, v26\nv_mul_u32_u24 v28, 192, v28\nv_lshl_add_u32 v28, v3, 4, v28")
        A("v_mov_b32 v29, 0x70000000\nv_cndmask_b32 v27, v29, v27, vcc\nv_cndmask_b32 v28, v29, v28, vcc")
        for kc in range(3):
            A(f"buffer_load_dwordx4 v[{32+4*kc}:{35+4*kc}], v27, s[4:7], 0 offen offset:{64*kc}")
            A(f"buffer_load_dwordx4 v[{44+4*kc}:{47+4*kc}], v28, s[8:11], 0 offen offset:{64*kc}")
        A("s_waitcnt vmcnt(0) lgkmcnt(0)")
        AC = 160
        for j in range(6):
            a = AC + 4*j
            A(f"v_mfma_f32_16x16x32_bf16 v[{a}:{a+3}], v[{16+4*(j&1)}:{19+4*(j&1)}], v[{44+4*(j>>1)}:{47+4*(j>>1)}], 0")
            for kc in range(3):
                w = WL + (j*3+kc)*4
                A(f"v_mfma_f32_16x16x32_bf16 v[{a}:{a+3}], v[{w}:{w+3}], v[{32+4*kc}:{35+4*kc}], v[{a}:{a+3}]")
        A("s_nop 7\ns_nop 1")
        A(f"v_mul_u32_u24 v30, {PL}, v3\nv_lshl_add_u32 v30, v24, 4, v30")
        for J in range(3):
            for d in range(4):
                A(f"v_cvt_pk_bf16_f32 v{56+d}, v{AC+8*J+2*d}, v{AC+8*J+2*d+1}")
            A(f"ds_write_b128 v30, v[56:59] offset:{4*J*PL}\ns_waitcnt lgkmcnt(0)")
    A("L_latdone:")
    AC = 160
    for i in range(24): A(f"v_mov_b32 v{AC+i}, 0")
    A(f"s_mul_i32 s26, s3, 20\nv_add_u32 v30, s26, v2\nv_lshlrev_b32 v30, 4, v30\nv_mul_u32_u24 v31, {PL}, v3\nv_add_u32 v30, v30, v31")
    A("s_mov_b32 s30, 0\ns_mov_b32 s31, 0\ns_mov_b32 s32, 0")
    A("L_tap:")
    A("s_waitcnt lgkmcnt(0)\ns_barrier")
    dma(16, "s30")
    A("s_waitcnt vmcnt(0)\ns_barrier")
    for kc in range(3):
        A(f"ds_read_b128 v[32:35], v30 offset:{4*kc*PL}")
        for j in range(6):
            for h in range(2):
                r = WL + 4*j + 2*h
                A(f"ds_read_b64_tr_b16 v[{r}:{r+1}], v{12+(j&1)} offset:{WB + (32*kc+16*h)*192 + j*32}")
        A("s_waitcnt lgkmcnt(0)")
        for j in range(6):
            a = AC + 4*j
            A(f"v_mfma_f32_16x16x32_bf16 v[{a}:{a+3}], v[{WL+4*j}:{WL+4*j+3}], v[32:35], v[{a}:{a+3}]")
    A("s_add_u32 s30, s30, 18432\ns_add_u32 s31, s31, 1\ns_cmp_eq_u32 s31, 5\ns_cselect_b32 s33, 256, 16\ns_cselect_b32 s31, 0, s31\nv_add_u32 v30, s33, v30")
    A("s_cmp_lt_u32 s30, 460800\ns_cbranch_scc1 L_tap")
    A("s_nop 7\ns_nop 1")
    if scale is not None:
        import struct
        A(f"s_mov_b32 s33, {struct.unpack('<I', struct.pack('<f', scale))[0]:#x}")
        for i in range(24): A(f"v_mul_f32 v{AC+i}, s33, v{AC+i}")
    A("s_add_u32 s26, s24, s3\ns_mul_i32 s26, s26, 224\ns_add_u32 s26, s26, s25\nv_add_u32 v24, s26, v2\nv_mul_u32_u24 v24, 192, v24")
    A("v_and_b32 v25, 1, v3\nv_lshl_add_u32 v24, v25, 5, v24\nv_lshrrev_b32 v25, 1, v3\nv_lshl_add_u32 v24, v25, 4, v24")
    for J in range(3):
        o = 32 + 4*J
        for d in range(4):
            A(f"v_cvt_pk_bf16_f32 v{o+d}, v{AC+8*J+2*d}, v{AC+8*J+2*d+1}")
        A(f"s_nop 1\nv_permlane16_swap_b32 v{o}, v{o+2}\nv_permlane16_swap_b32 v{o+1}, v{o+3}\ns_nop 1")
        A(f"buffer_store_dwordx4 v[{o}:{o+3}], v24, s[20:23], 0 offen offset:{64*J}")
    A("L_end:\ns_endpgm")
    A(f'''.section .rodata,"a"
.p2align 6
.amdhsa_kernel {KN}
  .amdhsa_next_free_vgpr 192
  .amdhsa_next_free_sgpr 64
  .amdhsa_accum_offset 192
  .amdhsa_group_segment_fixed_size 0
  .amdhsa_kernarg_size 56
  .amdhsa_user_sgpr_count 2
  .amdhsa_user_sgpr_kernarg_segment_ptr 1
  .amdhsa_system_sgpr_workgroup_id_x 1
  .amdhsa_float_denorm_mode_32 3
.end_amdhsa_kernel''')
    return "\n".join(L) + "\n"

if __name__ == "__main__":
    out = sys.argv[1]
    open(out, "w").write(gen(float(sys.argv[2]) if len(sys.argv) > 2 else None))
```

```python
import re

REG = re.compile(r"(?<![\w.])([vas])(?:\[(\d+):(\d+)\]|(\d+))(?![\w])")

def regs(tok):
    out = []
    for m in REG.finditer(tok):
        c = m.group(1)
        if m.group(2) is not None: out += [(c, i) for i in range(int(m.group(2)), int(m.group(3)) + 1)]
        else: out.append((c, int(m.group(4))))
    if re.search(r"\bvcc\b", tok): out.append(("x", "vcc"))
    if re.search(r"\bm0\b", tok): out.append(("x", "m0"))
    if re.search(r"\bexec\b", tok): out.append(("x", "exec"))
    return out

class I:
    def __init__(s, text, tag=None):
        s.text = text; s.tag = tag
        op, _, rest = text.partition(" ")
        s.op = op
        ops = [o.strip() for o in rest.split(",")] if rest else []
        s.d = []; s.u = []; s.srcc = []; s.ab = []; s.sdata = []
        R = [regs(o) for o in ops]
        allr = lambda a: [r for x in a for r in x]
        if op.startswith("v_mfma"):
            s.k = "mfma"; s.d = R[0]; s.ab = R[1] + R[2]; s.srcc = R[3]; s.u = s.ab + s.srcc
        elif op.startswith("ds_read"):
            s.k = "dsr"; s.d = R[0]; s.u = allr(R[1:])
        elif op.startswith("ds_write"):
            s.k = "dsw"; s.u = allr(R)
        elif op.startswith(("buffer_load", "global_load")):
            if re.search(r"\blds\b", text): s.k = "dma"; s.u = allr(R) + [("x", "m0")]
            else: s.k = "vld"; s.d = R[0]; s.u = allr(R[1:])
        elif op.startswith(("buffer_store", "global_store", "global_atomic", "buffer_atomic")):
            s.k = "vst"; s.u = allr(R)
            if "x4" in op or "x3" in op: s.sdata = R[0] if op.startswith("buffer") else R[1]
        elif op.startswith("v_"):
            s.k = "valu"; s.d = R[0]; s.u = allr(R[1:])
            if op.startswith("v_permlane"): s.d = R[0] + R[1]; s.u = R[0] + R[1]
            if op.startswith(("v_fmac", "v_writelane")): s.u += R[0]
        elif op.startswith(("s_load", "s_memrealtime", "s_memtime")):
            s.k = "smem"; s.d = R[0]; s.u = allr(R[1:])
        elif op in ("s_waitcnt", "s_nop", "s_barrier", "s_endpgm", "s_branch") or op.startswith(("s_cbranch", "s_setprio")):
            s.k = "ctl"
        elif op.startswith("s_cmp"):
            s.k = "salu"; s.u = allr(R)
        elif op.startswith("s_"):
            s.k = "salu"; s.d = R[0]; s.u = allr(R[1:])
        elif text.endswith(":") or text.startswith((".", ";")):
            s.k = "pseudo"
        else:
            raise ValueError(text)

class B:
    def __init__(s):
        s.out = []; s.hist = []
        s.vm = []; s.lg = []
        s.nops = 0; s.waits = 0
    def raw(s, t): s.out.append(t)
    def _emit(s, ins, states=1):
        s.out.append(ins.text); s.hist.append((ins, states))
        if len(s.hist) > 24: s.hist.pop(0)
    def reset(s):
        s.vm = []; s.lg = []
    def _states(s, c):
        dist = 0; need = 0
        for p, st in reversed(s.hist):
            need = max(need, s._haz(p, c) - dist); dist += st
        return need
    def cost(s, text): return s._states(I(text.split("\n")[0]))
    def waitcnt(s, vm=None, lg=None):
        p = []
        if vm is not None: vm = min(vm, 62)
        if lg is not None: lg = min(lg, 14)
        if vm is not None and vm < len(s.vm): s.vm = s.vm[len(s.vm) - vm:]; p.append(f"vmcnt({vm})")
        if lg is not None and lg < len(s.lg): s.lg = s.lg[len(s.lg) - lg:]; p.append(f"lgkmcnt({lg})")
        if p: s._emit(I("s_waitcnt " + " ".join(p))); s.waits += 1
    def wait_tag(s, tag):
        for q, name in ((s.vm, "vm"), (s.lg, "lg")):
            idx = [n for n, e in enumerate(q) if e.tag == tag]
            if idx: s.waitcnt(**{name: len(q) - 1 - idx[-1]})
    def _need(s, q, touched):
        for n in range(len(q) - 1, -1, -1):
            if touched & set(q[n].d): return len(q) - 1 - n
        return None
    def _haz(s, p, c):
        pd, cu, cd = set(p.d), set(c.u), set(c.d)
        vec = lambda x: {r for r in x if r[0] in "va"}
        sc = lambda x: {r for r in x if r[0] == "s" or r == ("x", "vcc")}
        n = 0
        if p.k == "mfma":
            if c.k == "mfma":
                if pd & set(c.ab): n = 8
                elif pd & set(c.srcc) and p.d != c.srcc: n = 6
            elif pd & (cu | cd): n = 8
            if c.k == "valu" and set(p.srcc) & cd: n = max(n, 3)
        elif p.k == "valu":
            if c.k == "mfma" and vec(pd) & cu: n = 2
            if c.k == "valu":
                if c.op.startswith("v_permlane") and vec(pd) & cu: n = 2
                if c.op.startswith(("v_readfirstlane", "v_readlane")) and vec(pd) & cu: n = 1
                if "dpp" in c.text and vec(pd) & cu: n = 2
                if sc(pd) & cu: n = max(n, 4 if c.op.startswith(("v_readlane", "v_writelane")) else 2)
            if c.k in ("vld", "vst", "dma") and sc(pd) & cu: n = 5
            if c.k == "salu" and sc(pd) & cu: n = 2
        elif p.k == "salu":
            if c.k == "dma" and ("x", "m0") in pd: n = 1
        if p.k == "vst" and set(p.sdata) & cd: n = max(n, 2)
        return n
    def __call__(s, text, tag=None):
        for t in text.split("\n"):
            t = t.strip()
            if t: s.one(t, tag)
    def one(s, text, tag=None):
        c = I(text, tag)
        if c.k == "pseudo": s.out.append(text); return
        touched = set(c.u) | set(c.d)
        nv = s._need(s.vm, touched); nl = s._need(s.lg, touched)
        if nl is not None and any(e.k == "smem" for e in s.lg): nl = 0
        if nv is not None or nl is not None: s.waitcnt(nv, nl)
        need = s._states(c)
        while need > 0:
            k = min(need, 16); s._emit(I(f"s_nop {k-1}"), k); need -= k; s.nops += k
        if c.op == "s_nop": s._emit(c, int(text.split()[1]) + 1)
        else: s._emit(c)
        if c.k in ("vld", "vst", "dma"): s.vm.append(c)
        if c.k in ("dsr", "dsw", "smem"): s.lg.append(c)
        if c.op == "s_waitcnt":
            m = re.search(r"vmcnt\((\d+)\)", text)
            if m: s.vm = s.vm[max(0, len(s.vm) - int(m.group(1))):]
            m = re.search(r"lgkmcnt\((\d+)\)", text)
            if m: s.lg = s.lg[max(0, len(s.lg) - int(m.group(1))):]
    def text(s): return "\n".join(s.out) + "\n"

def vr(c, a, n=4): return f"{c}[{a}:{a+n-1}]" if n > 1 else f"{c}{a}"
def mfma(d, a, b, c): return f"v_mfma_f32_16x16x32_bf16 {d}, {a}, {b}, {c}"

class F:
    def __init__(s, item, after=-1, before=10**9, tag=None): s.item = item; s.after = after; s.before = before; s.tag = tag
    def emit(s, b):
        if callable(s.item): s.item(b)
        else: b(s.item, s.tag)

def sched(b, mains, chains, per=2):
    chains = [list(c) for c in chains if c]
    for c in chains:
        for n in range(len(c) - 2, -1, -1): c[n].before = min(c[n].before, c[n + 1].before)
    for idx, m in enumerate(mains):
        while True:
            due = [c for c in chains if c and c[0].before <= idx]
            if not due: break
            c = min(due, key=lambda c: (0 if callable(c[0].item) else b.cost(c[0].item), c[0].before))
            assert c[0].after < idx, (c[0].item, c[0].after, idx)
            c.pop(0).emit(b)
        b(m)
        n0 = len(b.out)
        while len(b.out) - n0 < per:
            ok = [c for c in chains if c and c[0].after <= idx and (callable(c[0].item) or b.cost(c[0].item) == 0)]
            if not ok: break
            min(ok, key=lambda c: c[0].before).pop(0).emit(b)
    while any(chains):
        c = min((c for c in chains if c), key=lambda c: (0 if callable(c[0].item) else b.cost(c[0].item), c[0].before))
        c.pop(0).emit(b)
```

```python
import numpy as np, itertools
from fractions import Fraction as F
def mats(a, b):
    pts = [F(0), a, -a, b, -b]
    n = 6
    def poly(roots):
        p = [F(1)]
        for r in roots:
            p = [x - r*y for x, y in zip([F(0)] + p, p + [F(0)])]
        return p
    BT = []; G = []; AT = [[], []]
    for i, p in enumerate(pts):
        oth = [q for j, q in enumerate(pts) if j != i]
        c = poly(oth); den = F(1)
        for q in oth: den *= (p - q)
        BT.append(c + [F(0)]); G.append([p**k / den for k in range(5)])
        AT[0].append(F(1)); AT[1].append(p)
    BT.append(poly(pts)); G.append([F(0)]*4 + [F(1)]); AT[0].append(F(0)); AT[1].append(F(1))
    return AT, G, BT
def check(AT, G, BT):
    for r in range(2):
        for k in range(5):
            for j in range(6):
                s = sum(AT[r][x]*G[x][k]*BT[x][j] for x in range(6))
                assert s == (1 if j == r + k else 0), (r, k, j, s)
def amp(AT, G, BT):
    o = []
    for r in range(2):
        s = 0
        for x in range(6):
            w = 1 if x in (0, 5) else 2
            s += w * float(AT[r][x])**2 * sum(float(g)**2 for g in G[x]) * sum(float(t)**2 for t in BT[x])
        o.append((s / 5) ** 0.5)
    return o
if __name__ == "__main__":
    c = sorted({F(p, q) for p in range(1, 9) for q in range(1, 9)})
    res = []
    for a, b in itertools.combinations(c, 2):
        m = mats(a, b); check(*m); am = amp(*m); res.append((max(am), am, a, b))
    res.sort(key=lambda t: t[0])
    for r in res[:25]: print(r)
    for a, b in ((F(1), F(2)), (F(1,2), F(1)), (F(1,2), F(2)), (F(1,2), F(3,2)), (F(2,3), F(3,2))):
        m = mats(a, b); print(a, b, amp(*m));
        for M in m: print("  ", [[str(x) for x in r] for r in M])
```

```python
import sys, struct
from fractions import Fraction as Fr
from asmgen import *
from wino_num import mats, check
KN = "standalone__detection_seg_fpn_lateral__vision_kernel"
HDR = open("standalone__detection_seg_fpn_lateral__vision.s.ref").read().split("; Override")[0]
f32 = lambda x: struct.unpack("<I", struct.pack("<f", float(x)))[0]
def bf16(x):
    u = f32(x); assert u & 0xffff == 0 and Fr(struct.unpack("<f", struct.pack("<I", u))[0]) == x, x
    return u >> 16

NX, NP, NU = 9633792, 2408448, 552960
BIG = 0x40000000
NB, GS, RS = 1936, 27136, 54272
ST = RS; SW = ST + 18432; WSZ = 22464
OQX, OP = 15360, 17280
OPITCH = 2704
X, Y, Z = 4, 88, 172
NPROD = 30

def wino(a):
    AT, G, BT = mats(a, 1 / a); check(AT, G, BT)
    sc = {Fr(2, 3): [Fr(9, 8), Fr(3, 4), Fr(3, 4), Fr(9, 8), Fr(9, 8), Fr(9, 8)], Fr(1, 2): [Fr(1)] * 6}[a]
    bt = [[x * sc[k] for x in BT[k]] for k in range(6)]
    g = [[x / sc[k] for x in G[k]] for k in range(6)]
    g[3] = [x / a for x in g[3]]; g[4] = [-x / a for x in g[4]]
    xi = [[1, 2, 0], [3, 4, 5]]
    return bt, g, xi

def srd(b, r, p, n, back=0):
    if back: b(f"s_sub_u32 s{r}, s{p}, {back}\ns_subb_u32 s{r+1}, s{p+1}, 0")
    else: b(f"s_mov_b32 s{r}, s{p}\ns_mov_b32 s{r+1}, s{p+1}")
    b(f"s_mov_b32 s{r+2}, {n+back}\ns_mov_b32 s{r+3}, 0x20000")

def gen(a=Fr(2, 3), D=6, stamps=False, ldf="nt", stf="sc1", order="a", early=True, cpf=True):
    bt, G, xi = wino(a)
    b = B()
    nst = [0]
    def stamp(bb, i):
        if stamps: bb(f"s_memrealtime s[80:81]\ns_waitcnt lgkmcnt(0)\ns_mov_b32 s{84+i}, s80")
    def stamp_out(bb):
        if not stamps: return
        bb("s_mov_b64 exec, -1\nv_mov_b32 v3, 0")
        for i in range(16): bb(f"v_writelane_b32 v3, s{84+i}, {i}")
        bb(f"s_mov_b32 s18, 0x800000\ns_lshl_b32 s26, s2, 2\ns_add_u32 s26, s26, s3\ns_lshl_b32 s26, s26, 8\ns_add_u32 s26, s26, 0x400000\nv_lshrrev_b32 v2, 2, v1\nbuffer_store_dword v3, v2, s[16:19], s26 offen")
    b.raw(HDR.rstrip())
    b.raw("; @launch grid=(256,1,1) block=(256,1,1) lds=163840")
    b.raw(f'.amdgcn_target "amdgcn-amd-amdhsa--gfx950"\n.text\n.globl {KN}\n.p2align 8\n.type {KN},@function\n{KN}:')
    if stamps:
        for i in range(16): b(f"s_mov_b32 s{84+i}, 0")
    stamp(b, 0)
    b("s_load_dwordx8 s[36:43], s[0:1], 0\ns_load_dwordx4 s[44:47], s[0:1], 32\ns_load_dwordx2 s[48:49], s[0:1], 48")
    b("s_cmp_lt_u32 s2, 32\ns_cbranch_scc1 L_prod\ns_cmp_ge_u32 s2, 256\ns_cbranch_scc1 L_end")
    b("v_lshrrev_b32 v3, 6, v0\nv_and_b32 v0, 63, v0\nv_lshlrev_b32 v1, 4, v0\nv_readfirstlane_b32 s3, v3")
    b("s_and_b32 s26, s2, 7\ns_sub_u32 s27, s2, 32\ns_lshr_b32 s27, s27, 3\ns_and_b32 s28, s26, 3\ns_lshl_b32 s28, s28, 2\ns_and_b32 s29, s27, 3\ns_add_u32 s30, s28, s29")
    b("s_lshr_b32 s26, s26, 2\ns_mul_i32 s26, s26, 7\ns_lshr_b32 s27, s27, 2\ns_add_u32 s31, s26, s27")
    b("s_mul_i32 s25, s30, 2688\ns_lshl_b32 s24, s31, 4")
    b(f"s_mov_b32 s34, {BIG}\ns_cmp_eq_u32 s30, 0\ns_cselect_b32 s32, s34, 0\ns_cmp_eq_u32 s30, 15\ns_cselect_b32 s33, s34, 0")
    b("v_mov_b32 v20, s32\nv_mov_b32 v21, s33")
    b("v_xor_b32 v8, 32, v1\nv_and_b32 v3, 32, v0\nv_xor_b32 v7, v3, v1")
    b("s_and_b32 s26, s3, 1\ns_lshl_b32 s26, s26, 5\nv_xor_b32 v9, s26, v1")
    b("v_cmp_gt_u32 vcc, 24, v0\nv_cndmask_b32 v3, 0, v20, vcc\nv_or_b32 v6, v3, v1")
    b("v_cmp_gt_u32 vcc, 12, v0\nv_cndmask_b32 v3, 0, v20, vcc\nv_or_b32 v12, v3, v1")
    b("v_cmp_le_u32 vcc, 32, v0\nv_cndmask_b32 v3, 0, v21, vcc\nv_or_b32 v13, v3, v1")
    b("s_lshl_b32 s26, s3, 2\ns_add_u32 s26, s26, s24\ns_sub_u32 s26, s26, 2\ns_add_u32 s27, s24, s3\ns_add_u32 s27, s27, 14")
    for r in range(5):
        b(f"s_add_u32 s28, s26, {r}" if r < 4 else "s_mov_b32 s28, s27")
        b(f"s_mul_i32 s29, s28, 43008\ns_add_u32 s29, s29, s25\ns_cmp_lt_i32 s28, 0\ns_cselect_b32 s{50+r}, s34, s29")
    b("s_lshr_b32 s35, s25, 1")
    for cr in range(3):
        b(f"s_add_u32 s28, s26, {2*cr}" if cr < 2 else "s_mov_b32 s28, s27")
        b(f"s_ashr_i32 s28, s28, 1\ns_mul_i32 s29, s28, 21504\ns_add_u32 s29, s29, s35\ns_cmp_lt_i32 s28, 0\ns_cselect_b32 s{55+cr}, s34, s29")
    b("v_mov_b32 v10, s50\nv_mov_b32 v22, s51\nv_mov_b32 v23, s52\nv_subrev_u32 v22, 384, v22\nv_subrev_u32 v23, 768, v23")
    b("v_cmp_le_u32 vcc, 24, v0\nv_cndmask_b32 v10, v10, v22, vcc\nv_cmp_le_u32 vcc, 48, v0\nv_cndmask_b32 v10, v10, v23, vcc")
    b("v_mov_b32 v22, s53\nv_mov_b32 v11, s54\nv_subrev_u32 v22, 1152, v22\nv_subrev_u32 v11, 1536, v11")
    b("v_cmp_gt_u32 vcc, 32, v0\nv_cndmask_b32 v11, v11, v22, vcc\nv_cmp_gt_u32 vcc, 8, v0\nv_cndmask_b32 v11, v11, v23, vcc")
    b("v_add_u32 v3, 3072, v1\nv_add3_u32 v10, v10, v3, v21\nv_add3_u32 v11, v11, v3, v21")
    b(f"s_mul_i32 s58, s3, {WSZ}\ns_add_u32 s58, s58, {SW}")
    b("s_mul_i32 s26, s3, 3072\ns_mul_i32 s27, s3, 1536\ns_add_u32 s27, s27, 12288")
    srd(b, 12, 40, 18432); srd(b, 4, 36, NX, 384); srd(b, 8, 38, NP, 192)
    stamp(b, 1)
    def dma(v, s_, so, off, tag, fl=ldf): b(f"buffer_load_dwordx4 v{v}, s[{s_}:{s_+3}], {so} offen offset:{off} {fl} lds", tag)
    b(f"s_add_u32 m0, s26, {ST}")
    for n, v in enumerate((1, 7, 8)): dma(v, 12, "s26", 1024 * n, "wl", "")
    b(f"s_add_u32 m0, s27, {ST}")
    dma(9, 12, "s27", 0, "wl", "")
    b("s_bfm_b64 exec, 32, 0"); dma(9, 12, "s27", 1024, "wl", "")
    b(f"s_add_u32 m0, s58, {OQX}\ns_bfm_b64 exec, 56, 0"); dma(11, 4, "0", 1024, "q")
    b("s_mov_b64 exec, -1"); dma(10, 4, "0", 0, "q")
    for cr in range(3):
        b(f"s_add_u32 m0, s58, {OP + 1728*cr}"); dma(12, 8, f"s{55+cr}", 0, "q")
        b("s_bfm_b64 exec, 44, 0"); dma(13, 8, f"s{55+cr}", 1024, "q"); b("s_mov_b64 exec, -1")
    def xrow(bb, r):
        bb(f"s_add_u32 m0, s58, {3072*r}")
        for n, v in enumerate((6, 7, 8)): dma(v, 4, f"s{50+r}", 1024 * n, f"x{r}")
    xrow(b, 0); xrow(b, 1)
    srd(b, 16, 48, NU); srd(b, 20, 44, NX)
    b("v_and_b32 v4, 15, v0\nv_lshrrev_b32 v5, 4, v0")
    b("v_lshlrev_b32 v20, 4, v5\nv_add_u32 v20, s58, v20")
    b("v_lshrrev_b32 v21, 1, v4\nv_mul_u32_u24 v15, 192, v21\nv_add_u32 v15, v15, v20")
    b("v_min_u32 v16, 9, v4\nv_mul_u32_u24 v16, 192, v16\nv_add_u32 v16, v16, v20")
    b("v_lshrrev_b32 v17, 2, v4\nv_min_u32 v17, 2, v17\nv_mul_u32_u24 v17, 1728, v17\nv_add_u32 v17, v17, v20")
    b("v_and_b32 v21, 8, v4\nv_lshlrev_b32 v21, 2, v21\nv_lshlrev_b32 v22, 4, v5\nv_xor_b32 v21, v21, v22\nv_mul_u32_u24 v14, 192, v4\nv_add3_u32 v14, v14, v21, s58")
    b(f"v_bfe_u32 v20, v0, 2, 2\nv_lshl_add_u32 v20, v5, 3, v20\nv_mul_u32_u24 v20, 192, v20\nv_and_b32 v21, 3, v0\nv_lshl_add_u32 v20, v21, 3, v20\nv_add_u32 v20, {ST}, v20")
    b("v_and_b32 v23, 1, v5\nv_lshlrev_b32 v21, 5, v23\nv_add_u32 v18, v20, v21\nv_sub_u32 v19, v20, v21")
    b(f"v_mul_u32_u24 v20, {GS}, v23\nv_lshrrev_b32 v21, 1, v5\nv_mul_u32_u24 v21, 320, v21\nv_add_u32 v20, v20, v21")
    b(f"s_and_b32 s26, s3, 1\ns_mul_i32 s26, s26, {7*NB}\nv_lshl_add_u32 v2, v4, 4, v20\nv_add_u32 v2, s26, v2")
    b("v_cmp_le_u32 vcc, 14, v4\nv_subrev_u32 v21, 2, v4\nv_cndmask_b32 v22, v4, v21, vcc")
    b(f"v_mul_u32_u24 v21, {NB}, v22\nv_add_u32 v20, v20, v21\ns_lshl_b32 s26, s3, 6\ns_lshl_b32 s27, s3, 4\ns_add_u32 s27, s27, 256")
    b(f"v_add_u32 v88, s26, v20\nv_add_u32 v89, s27, v20\nv_add_u32 v90, {2*RS}, v88\nv_add_u32 v91, {2*RS}, v89")
    b("v_cmp_le_u32 s[62:63], 7, v22\nv_subrev_u32 v21, 7, v22\nv_cndmask_b32 v22, v22, v21, s[62:63]")
    b("v_lshlrev_b32 v21, 1, v5\nv_sub_u32 v21, v21, v22")
    for d in range(-1, 3): b(f"v_cmp_eq_u32 s[{66+2*d}:{67+2*d}], {d}, v21")
    b("v_cmp_eq_u32 s[72:73], 6, v22")
    for gg in range(3): b(f"v_cmp_eq_u32 s[{74+2*gg}:{75+2*gg}], {gg}, v5")
    for ph in range(3):
        for jp in range(3):
            c = [bf16(bt[xi[k][ph]][2*jp]) | bf16(bt[xi[k][ph]][2*jp+1]) << 16 for k in range(2)]
            b(f"v_mov_b32 v20, {c[0]:#x}\nv_mov_b32 v23, {c[1]:#x}\nv_cndmask_b32 v{104+jp}, v20, v23, s[62:63]")
        for h in range(2):
            t = 24 + 4*ph + h
            for jp in range(3):
                m = 66 + 2*(jp - h)
                b(f"v_cndmask_b32 v{t}, {0 if jp == 0 else 'v%d' % t}, v{104+jp}, s[{m}:{m+1}]")
        b(f"v_cndmask_b32 v{36+ph}, 0, v106, s[72:73]")
    b("v_and_b32 v20, 1, v4\nv_lshlrev_b32 v20, 4, v20\nv_mov_b32 v21, 0x3f80\nv_lshlrev_b32 v21, v20, v21")
    b("v_lshrrev_b32 v22, 1, v4\nv_lshlrev_b32 v23, 2, v5\nv_sub_u32 v22, v22, v23")
    for h in range(2):
        for d in range(4):
            b(f"v_cmp_eq_u32 vcc, {d - 8*h}, v22\nv_cndmask_b32 v20, 0, v21, vcc\nv_accvgpr_write_b32 a{108+4*h+d}, v20")
    b(f"s_and_b32 s26, s3, 1\ns_lshl_b32 s26, s26, 1\ns_lshr_b32 s27, s3, 1\ns_add_u32 s26, s26, s27\ns_mul_i32 s59, s26, {NU//4}\ns_movk_i32 s60, 3072\ns_mov_b32 s61, {f32(a):#x}")
    b.wait_tag("wl"); b("s_barrier")
    stamp(b, 2)
    WL = lambda kc, j: vr("a", (j*3 + kc) * 4)
    for j in range(6):
        for kc in range(3):
            for h in range(2):
                b(f"ds_read_b64_tr_b16 {vr('a', (j*3+kc)*4 + 2*h, 2)}, v{18 + (j&1)} offset:{(32*kc + 4*h)*192 + 32*j}")
    xrow(b, 2)
    XF = lambda r, kc: vr("a", 72 + 12*(r & 1) + 4*kc)
    PF = lambda kc: vr("a", 96 + 4*kc)
    SEL = lambda h: vr("a", 108 + 4*h)
    M = lambda j: 40 + 4*j
    PC = lambda j: vr("v", 64 + 4*j)
    LA = lambda n: 92 + 4*(n % 3)
    TA = lambda j, ph: 104 + 4*((j & 1)*3 + ph)
    VBC = lambda r, ph, kc: 136 + ((r*2 + ph - 1)*3 + kc)*4
    cvt = lambda d, s_: f"v_cvt_pk_bf16_f32 v{d}, v{s_}, v{s_+1}"
    AR = lambda s_, a_: vr("a", 128 + 12*(s_ % D) + 4*a_)
    def uload(s_, a_): return f"buffer_load_dwordx4 {AR(s_, a_)}, v1, s[16:19], s59 offen offset:{1024*a_} sc1"
    def poll(bb): bb("v_mov_b32 v39, 0\nglobal_load_dword v3, v39, s[46:47] sc1")
    def uinit(bb):
        for s_ in range(D - 1):
            for a_ in range(3): bb(uload(s_, a_))
            bb("s_add_u32 s59, s59, s60")
    b.wait_tag("q")
    for kc in range(3):
        b(f"ds_read_b128 {PF(kc)}, v17 offset:{OP + 1536 + 64*kc}\nds_read_b128 {XF(1, kc)}, v16 offset:{OQX + 64*kc}")
    stamp(b, 3)
    mains = []; chains = []; ln = 0
    def rowload(r, after, before):
        def early_chk(bb):
            bb("s_waitcnt vmcnt(0)"); stamp(bb, 8)
            bb(f"v_readfirstlane_b32 s82, v3\ns_cmp_lt_u32 s82, {NPROD}\ns_cbranch_scc1 L_notyet")
            snap = list(bb.hist)
            uinit(bb); bb("s_branch L_early_done\nL_notyet:"); bb.vm = []; bb.hist = snap; poll(bb); bb("L_early_done:"); bb.vm = []
        c = [F((lambda bb: (bb.wait_tag(f"x{r}"), stamp(bb, 4 + r))) if not (r == 4 and early) else early_chk, after, before)]
        if r % 2 == 0: c += [F(f"ds_read_b128 {PF(kc)}, v15 offset:{OP + 1728*(r//2) + 64*kc}", after, before) for kc in range(3)]
        c += [F(f"ds_read_b128 {XF(r, kc)}, v14 offset:{3072*r + 64*kc}", after, before) for kc in range(3)]
        if r < 2: c.append(F(lambda bb: xrow(bb, r + 3), after, before + 6))
        if r == 3 and early: c.append(F(poll, after, before + 6))
        return c
    for j in range(6):
        la = LA(ln); ln += 1
        mains.append(mfma(vr("v", la), PF(j >> 1), SEL(j & 1), "0"))
        for kc in range(3): mains.append(mfma(vr("v", la), XF(1, kc), WL(kc, j), vr("v", la)))
        e = len(mains) - 1
        chains.append([F(cvt(M(j) + 2 + h, la + 2*h), e, e + 9) for h in range(2)])
    chains.append(rowload(0, len(mains) - 4, len(mains)))
    tl = {}
    for r in range(5):
        base = len(mains)
        lastT = tl.get((r - 1, 5), base - 1)
        if r in (0, 2):
            for j in range(6): mains.append(mfma(PC(j), PF(j >> 1), SEL(j & 1), "0"))
        lend = {}
        def L(j):
            nonlocal ln
            la = LA(ln); ln += 1
            c = PC(j)
            if r == 4: mains.append(mfma(vr("v", la), PF(j >> 1), SEL(j & 1), "0")); c = vr("v", la)
            for kc in range(3):
                mains.append(mfma(vr("v", la), XF(r, kc), WL(kc, j), c)); c = vr("v", la)
            lend[j] = (len(mains) - 1, la)
        def T(j):
            e, la = lend[j]; t0 = len(mains)
            chains.append([F(cvt(M(j) + h, la + 2*h), e, t0 - 1) for h in range(2)])
            for ph in range(3): mains.append(mfma(vr("v", TA(j, ph)), vr("v", M(j)), vr("v", 24 + 4*ph), "0"))
            tl[(r, j)] = len(mains) - 1
        seq = "L0 L1 L2 T0 L3 T1 L4 T2 L5 T3 T4 T5".split()
        for s_ in seq: (L if s_[0] == "L" else T)(int(s_[1]))
        c = []
        for ph in range(3):
            m = 74 + 2*(r >> 1)
            c.append(F(f"v_cndmask_b32 v{26 + 4*ph + (r & 1)}, 0, v{36+ph}, s[{m}:{m+1}]", lastT, tl[(r, 0)] - 4))
            c.append(F(f"v_mov_b32 v{27 + 4*ph - (r & 1)}, 0", lastT, tl[(r, 0)] - 4))
        chains.append(c)
        if r < 4: chains.append(rowload(r + 1, lend[5][0], len(mains) - 3))
    keys = sorted(tl)
    for n, (r, j) in enumerate(keys):
        kc = j >> 1
        for ph in range(3):
            e = tl[(r, j)] - 2 + ph
            dl = tl[keys[n + 2]] - 2 + ph if n + 2 < len(keys) else 10**9 - 3 + ph
            d = (128 + 4*((r*3 + kc) & 1) if ph == 0 else VBC(r, ph, kc)) + 2*(j & 1)
            c = [F(cvt(d + h, TA(j, ph) + 2*h), e, dl) for h in range(2)]
            if ph == 0:
                if j & 1:
                    c0 += c; c0.append(F(f"ds_write_b128 v{88 + (r == 4)}, {vr('v', d - 2)} offset:{640*kc + 16*(r & 3)}", e, dl))
                else: c0 = c; chains.append(c0)
            else: chains.append(c)
    sched(b, mains, chains)
    stamp(b, 9)
    if early: b(f"s_cmp_ge_u32 s82, {NPROD}\ns_cbranch_scc1 L_go")
    else: poll(b)
    snap = list(b.hist)
    b("s_mov_b32 s83, 0\nL_spin:\ns_waitcnt vmcnt(0)")
    b(f"v_readfirstlane_b32 s82, v3\ns_cmp_ge_u32 s82, {NPROD}\ns_cbranch_scc1 L_flag\ns_add_u32 s83, s83, 1\ns_cmp_ge_u32 s83, 0x10000\ns_cbranch_scc1 L_flag")
    poll(b); b("s_branch L_spin\nL_flag:"); b.vm = []
    uinit(b); b("L_go:"); b.hist = snap
    stamp(b, 10)
    b.waitcnt(lg=0); b("s_barrier")
    stamp(b, 11)
    BF = lambda s_, t: vr("a", 28*(s_ & 1) + 4*t)
    def bread(s_, t):
        di, kc = divmod(s_ % 15, 3)
        return f"ds_read_b128 {BF(s_, t)}, v2 offset:{t*NB + 640*kc + 16*di}"
    for t in range(7): b(bread(0, t))
    mains = []; pos = {}
    ACC = (X, Y, Z)
    tiles = [(a_, t) for a_ in range(3) for t in range(7)] if order == "a" else [(a_, t) for t in range(7) for a_ in range(3)]
    tix = lambda a_, t: 4*(a_*7 + t)
    for s_ in range(45):
        ph = s_ // 15
        for a_, t in tiles:
            c = vr("v", ACC[ph] + tix(a_, t))
            if s_ % 15 == 0: c = "0" if ph == 0 else vr("v", ACC[ph - 1] + tix(a_, t))
            pos[(s_, a_, t)] = len(mains)
            mains.append(mfma(vr("v", ACC[ph] + tix(a_, t)), AR(s_, a_), BF(s_, t), c))
    S = lambda s_: 21 * s_
    def bar(bb): bb("s_barrier")
    cb = []; ca = []
    for s_ in range(1, 45):
        if s_ == 15: cb.append(F(lambda bb: (bb.wait_tag("vw"), bar(bb)), S(14) - 1, S(14) + 1))
        if s_ % 15 == 0: cb.append(F(f"v_add_u32 v2, {RS}, v2", S(s_ - 1) - 1, S(s_)))
        for t in range(7): cb.append(F(bread(s_, t), S(s_ - 1) + 2*t - 1, S(s_ - 1) + 2*t + 6))
    for s_ in range(D - 1, 45):
        w0 = S(s_ - D + 1)
        for a_ in range(3): ca.append(F(uload(s_, a_), w0 + 6*a_ + 1, w0 + 6*a_ + 7))
        ca.append(F("s_add_u32 s59, s59, s60", w0 + 14, w0 + 21))
    cw = []; n = 0
    for ph in (1, 2):
        for r in range(5):
            for kc in range(3):
                p0 = S(n // 3) + 15 + 2*(n % 3); n += 1
                cw.append(F(f"ds_write_b128 v{88 + (r == 4) + 2*(ph == 2)}, {vr('v', VBC(r, ph, kc))} offset:{(RS if ph == 1 else 0) + 640*kc + 16*(r & 3)}", p0, S(13), "vw"))
    ce = [F(f"s_mul_i32 s26, s3, 21504\nv_add_u32 v0, s26, v1\ns_xor_b32 s27, s3, 1\ns_mul_i32 s27, s27, 21504\nv_add_u32 v3, s27, v1", S(29), S(30))]
    ce.append(F(bar, S(30), S(30) + 2))
    for n, (a_, t) in enumerate(tiles):
        o = tix(a_, t); p0 = max(pos[(30, a_, t)] + 2, S(30) + 4 + 4*n)
        for e in range(4): ce.append(F(f"v_fma_f32 v{Y+o+e}, 2.0, v{X+o+e}, -v{Y+o+e}", p0, S(36)))
        ce.append(F(f"ds_write_b128 v0, {vr('v', Y + o)} offset:{256*o}", p0, S(36), "ex"))
    ce.append(F(lambda bb: (bb.wait_tag("ex"), bar(bb)), S(35), S(36)))
    for n, (a_, t) in enumerate(tiles):
        ce.append(F(f"ds_read_b128 {vr('v', X + tix(a_, t))}, v3 offset:{256*tix(a_, t)}", S(35) + 2*n, S(39), "er"))
    ce.append(F(lambda bb: (bb.wait_tag("er"), bar(bb)), S(38), S(39)))
    ci = []
    for n, (a_, t) in enumerate(tiles):
        s_ = 39 + n % 5; o = tix(a_, t)
        ci.append([F(f"v_fmac_f32 v{Z+o+e}, s61, v{X+o+e}", pos[(s_, a_, t)] + 3, pos[(s_ + 1, a_, t)] - 2) for e in range(4)])
    co = [F(f"v_lshrrev_b32 v{Y}, 4, v1\nv_and_b32 v{Y+1}, 15, v{Y}\nv_lshrrev_b32 v{Y}, 4, v{Y}", S(40), S(44)),
          F(f"v_mul_u32_u24 v{Y+1}, {OPITCH}, v{Y+1}\nv_lshl_add_u32 v0, v{Y}, 3, v{Y+1}", S(40), S(44)),
          F(f"s_and_b32 s26, s3, 1\ns_mul_i32 s26, s26, 192\ns_lshr_b32 s27, s3, 1", S(40), S(44)),
          F(f"s_mul_i32 s27, s27, 96\ns_add_u32 s26, s26, s27\nv_add_u32 v0, s26, v0", S(40), S(44)),
          F(f"s_mul_i32 s26, s3, {4*OPITCH}\nv_add_u32 v3, s26, v1", S(40), S(44)),
          F(f"s_lshl_b32 s26, s3, 2\ns_add_u32 s26, s26, s24\ns_mul_i32 s26, s26, 43008\ns_add_u32 s26, s26, s25", S(40), S(44))]
    cf = []
    for n, (a_, t) in enumerate(tiles):
        o = tix(a_, t); e = pos[(44, a_, t)]; d = Y + 4 + 2*n
        cf.append([F(cvt(d, Z + o), e, 10**9 - 30 + n), F(cvt(d + 1, Z + o + 2), e, 10**9 - 30 + n),
                   F(f"ds_write_b64 v0, {vr('v', d, 2)} offset:{384*t + 32*a_}", e, 10**9 - 30 + n)])
    if stamps: cb.insert(0, F("s_nop 0"))
    sched(b, mains, [cb, ca, cw, ce, co] + ci + cf)
    stamp(b, 12)
    b.waitcnt(lg=0); b("s_barrier\ns_bfm_b64 exec, 56, 0")
    stamp(b, 13)
    for rr in range(4):
        for n in range(3): b(f"ds_read_b128 {vr('v', X + 4*(3*rr + n))}, v3 offset:{OPITCH*rr + 896*n}")
    for rr in range(4):
        for n in range(3): b(f"buffer_store_dwordx4 {vr('v', X + 4*(3*rr + n))}, v1, s[20:23], s26 offen offset:{896*n} {stf}")
        if rr < 3: b("s_add_u32 s26, s26, 43008")
    if stamps:
        stamp(b, 14); b("s_waitcnt vmcnt(0)"); stamp(b, 15); stamp_out(b)
    b("L_end:\ns_endpgm")
    b.hist = []; b.reset(); b.lg = [I("s_load_dwordx16 s[36:51], s[0:1], 0")]
    b("L_prod:")
    b("v_lshrrev_b32 v3, 6, v0\nv_and_b32 v0, 63, v0\nv_lshlrev_b32 v1, 4, v0\nv_readfirstlane_b32 s3, v3")
    b(f"s_cmp_eq_u32 s3, 3\ns_cbranch_scc1 L_pf\ns_cmp_ge_u32 s2, {NPROD}\ns_cbranch_scc1 L_end2")
    b("s_lshr_b32 s24, s2, 1\ns_and_b32 s25, s2, 1\ns_mul_i32 s26, s24, 171\ns_lshr_b32 s26, s26, 9\ns_mul_i32 s27, s26, 3\ns_sub_u32 s27, s24, s27")
    b("s_mul_i32 s28, s26, 92160\ns_mul_i32 s27, s27, 6144\ns_add_u32 s28, s28, s27\ns_mul_i32 s27, s25, 3\ns_add_u32 s27, s27, s3\ns_lshl_b32 s27, s27, 5\ns_add_u32 s28, s28, s27")
    b("v_lshrrev_b32 v2, 1, v0\nv_mul_u32_u24 v2, 192, v2\nv_and_b32 v3, 1, v0\nv_lshl_add_u32 v2, v3, 4, v2")
    b("s_mul_i32 s29, s3, 5120\nv_lshl_add_u32 v4, v0, 3, s29")
    srd(b, 12, 42, 460800)
    stamp(b, 1)
    for dj in range(5):
        b(f"s_add_u32 m0, s29, {1024*dj}\nbuffer_load_dwordx4 v2, s[12:15], s28 offen lds\ns_add_u32 s28, s28, 18432", f"w{dj}")
    srd(b, 16, 48, NU)
    b(f"s_mul_i32 s30, s25, {NU//4}\ns_mul_i32 s27, s24, 3072\ns_add_u32 s30, s30, s27\ns_lshl_b32 s27, s3, 10\ns_add_u32 s30, s30, s27")
    for k in range(2):
        for j in range(5): b(f"s_mov_b32 s{50 + 10*k + 2*j}, {f32(G[xi[k][0]][j]):#x}")
    b(f"s_mov_b32 s70, {f32(G[0][0]):#x}\ns_mov_b32 s72, 0xffff0000")
    assert G[0][0] == G[5][4]
    for k in range(2):
        sg = 1 if k == 0 else -1
        assert all(G[xi[k][1]][j] == sg * (-1)**j * G[xi[k][0]][j] for j in range(5))
    W = lambda dj: 8 + 4*dj
    Fp = lambda dj, d: 32 + 8*dj + 2*d
    for dj in range(5):
        b.wait_tag(f"w{dj}")
        for h in range(2): b(f"ds_read_b64_tr_b16 {vr('v', W(dj) + 2*h, 2)}, v4 offset:{1024*dj + 512*h}")
    stamp(b, 2)
    for dj in range(5):
        for d in range(4): b(f"v_lshlrev_b32 v{Fp(dj, d)}, 16, v{W(dj)+d}\nv_and_b32 v{Fp(dj, d)+1}, s72, v{W(dj)+d}")
    p2 = lambda r: vr("v", r, 2)
    def ust(r, k, ph): b(f"s_add_u32 s31, s30, {k*(NU//2) + ph*46080}\nbuffer_store_dwordx4 {vr('v', r)}, v1, s[16:19], s31 offen sc1")
    for k in range(2):
        E, O, R = 80, 88, 96 + 24*k
        sc_ = lambda j: f"s[{50 + 10*k + 2*j}:{51 + 10*k + 2*j}]"
        for j in range(5):
            t = E if j % 2 == 0 else O
            for d in range(4):
                if j < 2: b(f"v_pk_mul_f32 {p2(t + 2*d)}, {p2(Fp(j, d))}, {sc_(j)} op_sel_hi:[1,0]")
                else: b(f"v_pk_fma_f32 {p2(t + 2*d)}, {p2(Fp(j, d))}, {sc_(j)}, {p2(t + 2*d)} op_sel_hi:[1,0,1]")
        for d in range(4): b(f"v_pk_add_f32 {p2(R + 2*d)}, {p2(E + 2*d)}, {p2(O + 2*d)}")
        for d in range(4): b(cvt(R + 16 + d, R + 2*d))
        ust(R + 16, k, 0)
        n_ = "neg_lo:[0,1] neg_hi:[0,1]" if k == 0 else "neg_lo:[1,0] neg_hi:[1,0]"
        for d in range(4): b(f"v_pk_add_f32 {p2(R + 8 + 2*d)}, {p2(E + 2*d)}, {p2(O + 2*d)} {n_}")
        for d in range(4): b(cvt(R + 20 + d, R + 8 + 2*d))
        ust(R + 20, k, 1)
    for k in range(2):
        if G[0][0] == 1: ust(W(4*k), k, 2)
        else:
            for d in range(4): b(f"v_pk_mul_f32 {p2(80 + 2*d)}, {p2(Fp(4*k, d))}, s[70:71] op_sel_hi:[1,0]")
            for d in range(4): b(cvt(144 + 4*k + d, 80 + 2*d))
            ust(144 + 4*k, k, 2)
    stamp(b, 3)
    b("s_waitcnt vmcnt(0)"); stamp(b, 4); b("s_barrier")
    b("s_cmp_lg_u32 s3, 0\ns_cbranch_scc1 L_pdone")
    b("v_mov_b32 v2, 0\nv_mov_b32 v3, 1\ns_mov_b64 exec, 1\nglobal_atomic_add v2, v3, s[46:47] sc1")
    if stamps: b("s_waitcnt vmcnt(0)"); stamp(b, 5)
    b("L_pdone:")
    stamp_out(b)
    b("L_end2:\ns_endpgm")
    b("L_pf:")
    if cpf:
        b(f"s_getpc_b64 s[4:5]\nL_pc:\ns_sub_u32 s4, s4, L_pc-{KN}\ns_subb_u32 s5, s5, 0\ns_mov_b32 s6, L_pc-{KN}\ns_mov_b32 s7, 0x20000")
        b("s_lshr_b32 s26, s2, 3\ns_lshl_b32 s26, s26, 13\nv_lshlrev_b32 v2, 3, v1\nbuffer_load_dword v3, v2, s[4:7], s26 offen\ns_waitcnt vmcnt(0)")
    b("s_endpgm")
    b.raw(f'''.section .rodata,"a"
.p2align 6
.amdhsa_kernel {KN}
  .amdhsa_next_free_vgpr 512
  .amdhsa_next_free_sgpr 102
  .amdhsa_accum_offset 256
  .amdhsa_group_segment_fixed_size 0
  .amdhsa_kernarg_size 56
  .amdhsa_user_sgpr_count 2
  .amdhsa_user_sgpr_kernarg_segment_ptr 1
  .amdhsa_system_sgpr_workgroup_id_x 1
  .amdhsa_float_denorm_mode_32 3
.end_amdhsa_kernel''')
    print("nops", b.nops, "waits", b.waits, "lines", len(b.out), file=sys.stderr)
    return b.text()

if __name__ == "__main__":
    kw = {}
    for x in sys.argv[2:]:
        k, v = x.split("=", 1)
        kw[k] = Fr(v) if k == "a" else (int(v) if v.lstrip("-").isdigit() else v)
    open(sys.argv[1], "w").write(gen(**kw))
```

```python
import re

REG = re.compile(r"(?<![\w.])([vas])(?:\[(\d+):(\d+)\]|(\d+))(?![\w])")

def regs(tok):
    out = []
    for m in REG.finditer(tok):
        c = m.group(1)
        if m.group(2) is not None: out += [(c, i) for i in range(int(m.group(2)), int(m.group(3)) + 1)]
        else: out.append((c, int(m.group(4))))
    if re.search(r"\bvcc\b", tok): out.append(("x", "vcc"))
    if re.search(r"\bm0\b", tok): out.append(("x", "m0"))
    if re.search(r"\bexec\b", tok): out.append(("x", "exec"))
    return out

class I:
    def __init__(s, text, tag=None):
        s.text = text; s.tag = tag
        op, _, rest = text.partition(" ")
        s.op = op
        ops = [o.strip() for o in rest.split(",")] if rest else []
        s.d = []; s.u = []; s.srcc = []; s.ab = []; s.sdata = []
        R = [regs(o) for o in ops]
        allr = lambda a: [r for x in a for r in x]
        if op.startswith("v_mfma"):
            s.k = "mfma"; s.d = R[0]; s.ab = R[1] + R[2]; s.srcc = R[3]; s.u = s.ab + s.srcc
        elif op.startswith("ds_read"):
            s.k = "dsr"; s.d = R[0]; s.u = allr(R[1:])
            if "addtid" in op: s.u.append(("x", "m0"))
        elif op.startswith("ds_write"):
            s.k = "dsw"; s.u = allr(R)
            if "addtid" in op: s.u.append(("x", "m0"))
        elif op.startswith(("buffer_load", "global_load")):
            if re.search(r"\blds\b", text) or "_lds_" in op: s.k = "dma"; s.u = allr(R) + [("x", "m0")]
            else: s.k = "vld"; s.d = R[0]; s.u = allr(R[1:])
        elif op.startswith(("buffer_store", "global_store", "global_atomic", "buffer_atomic")):
            s.k = "vst"; s.u = allr(R)
            if "x4" in op or "x3" in op: s.sdata = R[0] if op.startswith("buffer") else R[1]
        elif op.startswith("v_"):
            s.k = "valu"; s.d = R[0]; s.u = allr(R[1:])
            if op.startswith("v_permlane"): s.d = R[0] + R[1]; s.u = R[0] + R[1]
            if op.startswith(("v_fmac", "v_writelane")): s.u += R[0]
        elif op.startswith(("s_load", "s_memrealtime", "s_memtime")):
            s.k = "smem"; s.d = R[0]; s.u = allr(R[1:])
        elif op in ("s_waitcnt", "s_nop", "s_barrier", "s_endpgm", "s_branch") or op.startswith(("s_cbranch", "s_setprio")):
            s.k = "ctl"
        elif op.startswith("s_cmp"):
            s.k = "salu"; s.u = allr(R)
        elif op.startswith("s_"):
            s.k = "salu"; s.d = R[0]; s.u = allr(R[1:])
        elif text.endswith(":") or text.startswith((".", ";")):
            s.k = "pseudo"
        else:
            raise ValueError(text)

def icost(c):
    nv = len([r for r in c.u if r[0] in "va"])
    if c.k == "valu": return 8 if c.op.startswith("v_permlane") else 4
    if c.k in ("dsr", "dsw"): return 4 * max(1, nv)
    if c.k in ("vld", "vst", "dma"): return 4 * nv + (4 if c.op.startswith("buffer") else 0)
    return 4

class B:
    def __init__(s):
        s.out = []; s.hist = []
        s.vm = []; s.lg = []
        s.nops = 0; s.waits = 0
        s.t = 0; s.tm = -100; s.tds = -100; s.prev = None; s.nm = 0
    def raw(s, t): s.out.append(t)
    def _emit(s, ins, states=1):
        k = ins.k
        if k == "mfma":
            s.t = max(s.t, s.tm + 16); s.tm = s.t; s.t += 4; s.nm += 1
        elif k in ("salu", "ctl", "smem"): s.t += 4 * states
        else:
            s.t = max(s.t, s.tm + 8)
            if k != "valu" and s.prev is not None and s.prev.k == "valu": s.t += 8
            if k in ("vld", "vst", "dma") and s.prev is not None and s.prev.k == "salu": s.t += 4
            if k in ("dsr", "dsw"): s.t = max(s.t, s.tds); s.tds = s.t + 2 * icost(ins)
            s.t += icost(ins)
        s.prev = ins
        s.out.append(ins.text); s.hist.append((ins, states))
        if len(s.hist) > 24: s.hist.pop(0)
    def reset(s):
        s.vm = []; s.lg = []
    def _states(s, c):
        dist = 0; need = 0
        for p, st in reversed(s.hist):
            need = max(need, s._haz(p, c) - dist); dist += st
        return need
    def need_wait(s, inss):
        touched = set()
        for c in inss: touched |= set(c.u) | set(c.d)
        nv = s._need(s.vm, touched); nl = s._need(s.lg, touched)
        if nl is not None and any(e.k == "smem" for e in s.lg): nl = 0
        return nv, nl
    def cost(s, text): return s._states(I(text.split("\n")[0]))
    def waitcnt(s, vm=None, lg=None):
        p = []
        if vm is not None: vm = min(vm, 62)
        if lg is not None: lg = min(lg, 14)
        if vm is not None and vm < len(s.vm): s.vm = s.vm[len(s.vm) - vm:]; p.append(f"vmcnt({vm})")
        if lg is not None and lg < len(s.lg): s.lg = s.lg[len(s.lg) - lg:]; p.append(f"lgkmcnt({lg})")
        if p: s._emit(I("s_waitcnt " + " ".join(p))); s.waits += 1
    def wait_tag(s, tag):
        for q, name in ((s.vm, "vm"), (s.lg, "lg")):
            idx = [n for n, e in enumerate(q) if e.tag == tag]
            if idx: s.waitcnt(**{name: len(q) - 1 - idx[-1]})
    def _need(s, q, touched):
        for n in range(len(q) - 1, -1, -1):
            if touched & set(q[n].d): return len(q) - 1 - n
        return None
    def _haz(s, p, c):
        pd, cu, cd = set(p.d), set(c.u), set(c.d)
        vec = lambda x: {r for r in x if r[0] in "va"}
        sc = lambda x: {r for r in x if r[0] == "s" or r == ("x", "vcc")}
        n = 0
        if p.k == "mfma":
            if c.k == "mfma":
                if pd & set(c.ab): n = 8
                elif pd & set(c.srcc) and p.d != c.srcc: n = 6
            elif pd & (cu | cd): n = 8
            if c.k == "valu" and set(p.srcc) & cd: n = max(n, 3)
        elif p.k == "valu":
            if c.k == "mfma" and vec(pd) & cu: n = 2
            if c.k == "valu":
                if c.op.startswith("v_permlane") and vec(pd) & cu: n = 2
                if c.op.startswith(("v_readfirstlane", "v_readlane")) and vec(pd) & cu: n = 1
                if "dpp" in c.text and vec(pd) & cu: n = 2
                if sc(pd) & cu: n = max(n, 4 if c.op.startswith(("v_readlane", "v_writelane")) else 2)
            if c.k in ("vld", "vst", "dma") and sc(pd) & cu: n = 5
            if c.k == "salu" and sc(pd) & cu: n = 2
        elif p.k == "salu":
            if ("x", "m0") in pd and ("x", "m0") in cu and c.k in ("dma", "dsr", "dsw"): n = 1
        if p.k == "vst" and set(p.sdata) & cd: n = max(n, 2)
        return n
    def __call__(s, text, tag=None):
        for t in text.split("\n"):
            t = t.strip()
            if t: s.one(t, tag)
    def one(s, text, tag=None):
        c = I(text, tag)
        if c.k == "pseudo": s.out.append(text); return
        touched = set(c.u) | set(c.d)
        nv = s._need(s.vm, touched); nl = s._need(s.lg, touched)
        if nl is not None and any(e.k == "smem" for e in s.lg): nl = 0
        if nv is not None or nl is not None: s.waitcnt(nv, nl)
        need = s._states(c)
        while need > 0:
            k = min(need, 16); s._emit(I(f"s_nop {k-1}"), k); need -= k; s.nops += k
        if c.op == "s_nop": s._emit(c, int(text.split()[1]) + 1)
        else: s._emit(c)
        if c.k in ("vld", "vst", "dma"): s.vm.append(c)
        if c.k in ("dsr", "dsw", "smem"): s.lg.append(c)
        if c.op == "s_waitcnt":
            m = re.search(r"vmcnt\((\d+)\)", text)
            if m: s.vm = s.vm[max(0, len(s.vm) - int(m.group(1))):]
            m = re.search(r"lgkmcnt\((\d+)\)", text)
            if m: s.lg = s.lg[max(0, len(s.lg) - int(m.group(1))):]
    def text(s): return "\n".join(s.out) + "\n"

def vr(c, a, n=4): return f"{c}[{a}:{a+n-1}]" if n > 1 else f"{c}{a}"
def mfma(d, a, b, c): return f"v_mfma_f32_16x16x32_bf16 {d}, {a}, {b}, {c}"

class F:
    def __init__(s, item, after=-1, before=10**9, tag=None, big=False):
        s.item = item; s.after = after; s.before = before; s.tag = tag; s.big = big
        if callable(item): s.ins = None; s.cls = 0
        else:
            s.ins = I(item); s.cls = {"valu": 2, "salu": 0, "ctl": 0}.get(s.ins.k, 1)
    def emit(s, b):
        if callable(s.item): s.item(b)
        else: b(s.item, s.tag)
    def haz(s, b): return 0 if s.ins is None else b._states(s.ins)

def FL(text, after=-1, before=10**9, tag=None): return [F(t.strip(), after, before, tag) for t in text.split("\n") if t.strip()]

def sched(b, mains, chains, marks=None):
    chains = [list(c) for c in chains if c]
    for c in chains:
        for n in range(len(c) - 2, -1, -1): c[n].before = min(c[n].before, c[n + 1].before)
    mi = [I(m) for m in mains]
    forced = 0
    for idx, m in enumerate(mains):
        while True:
            due = [c for c in chains if c and c[0].before <= idx]
            if not due: break
            c = min(due, key=lambda c: (c[0].haz(b), c[0].cls, c[0].before))
            assert c[0].after < idx, (c[0].item, c[0].after, c[0].before, idx)
            c.pop(0).emit(b); forced += 1
        if marks and idx in marks: marks[idx](b)
        b(m)
        live = [c for c in chains if c and c[0].after <= idx]
        pick = lambda cls, ok=lambda f: True: min((c for c in live if c and c[0].after <= idx and c[0].cls == cls and ok(c[0])), key=lambda c: c[0].before, default=None)
        cm = pick(1, lambda f: f.haz(b) == 0)
        cv = pick(2, lambda f: f.haz(b) <= 1)
        probe = mi[idx + 1:idx + 2] + [c[0].ins for c in (cm, cv) if c]
        nv, nl = b.need_wait(probe)
        budget = 8; salu = False
        n0 = len(b.out)
        if nv is not None or nl is not None: b.waitcnt(nv, nl)
        cs = pick(0, lambda f: f.haz(b) == 0)
        if cs and (len(b.out) == n0 or cs[0].before <= idx + 2) and not (cs[0].ins is not None and cs[0].ins.k == "salu" and cm and cm[0].ins.k in ("vld", "vst", "dma") and cs[0].before > idx + 2):
            big = cs[0].big; cs.pop(0).emit(b)
            if big: continue
        budget -= 4 * max(0, len(b.out) - n0 - 1)
        ds = False; vm = False
        while budget > 0:
            c = pick(1, lambda f: f.haz(b) == 0 and b.need_wait([f.ins]) == (None, None) and (b.prev.k != "salu" or f.ins.k in ("dsr", "dsw"))
                     and not (ds and f.ins.k in ("dsr", "dsw")) and not (vm and f.ins.k not in ("dsr", "dsw")) and (icost(f.ins) <= budget or budget == 8))
            if not c: break
            f = c.pop(0); budget -= icost(f.ins); f.emit(b)
            if f.ins.k in ("dsr", "dsw"): ds = True
            else: vm = True
        while budget > 0:
            c = pick(2, lambda f: f.haz(b) == 0 and b.need_wait([f.ins]) == (None, None))
            if not c:
                c = pick(0, lambda f: f.ins is not None and f.haz(b) == 0)
                if not c: break
            f = c.pop(0); budget -= icost(f.ins); f.emit(b)
    while any(chains):
        c = min((c for c in chains if c), key=lambda c: (c[0].haz(b), c[0].before))
        c.pop(0).emit(b)
    return forced
```

```python
import sys, struct
from fractions import Fraction as Fr
from asmgen import *
from wino_num import mats, check
KN = "standalone__detection_seg_fpn_lateral__vision_kernel"
HDR = open("standalone__detection_seg_fpn_lateral__vision.s.ref").read().split("; Override")[0]
f32 = lambda x: struct.unpack("<I", struct.pack("<f", float(x)))[0]
def bf16(x):
    u = f32(x); assert u & 0xffff == 0 and Fr(struct.unpack("<f", struct.pack("<I", u))[0]) == x, x
    return u >> 16

NX, NP, NU = 9633792, 2408448, 552960
BIG = 0x40000000
NB, GS, RS = 1936, 27136, 54272
ST = RS; SW = ST + 18432; WSZ = 22464
OQX, OP = 15360, 17280
OPITCH = 2704
X, Y, Z = 4, 88, 172
NPROD = 30

def wino(a):
    AT, G, BT = mats(a, 1 / a); check(AT, G, BT)
    sc = {Fr(2, 3): [Fr(9, 8), Fr(3, 4), Fr(3, 4), Fr(9, 8), Fr(9, 8), Fr(9, 8)], Fr(1, 2): [Fr(1)] * 6}[a]
    bt = [[x * sc[k] for x in BT[k]] for k in range(6)]
    g = [[x / sc[k] for x in G[k]] for k in range(6)]
    g[3] = [x / a for x in g[3]]; g[4] = [-x / a for x in g[4]]
    xi = [[1, 2, 0], [3, 4, 5]]
    return bt, g, xi

def srd(b, r, p, n, back=0):
    if back: b(f"s_sub_u32 s{r}, s{p}, {back}\ns_subb_u32 s{r+1}, s{p+1}, 0")
    else: b(f"s_mov_b32 s{r}, s{p}\ns_mov_b32 s{r+1}, s{p+1}")
    b(f"s_mov_b32 s{r+2}, {n+back}\ns_mov_b32 s{r+3}, 0x20000")

def gen(a=Fr(2, 3), D=6, stamps=False, ldf="nt", stf="sc1", order="a", early=True, cpf=True):
    bt, G, xi = wino(a)
    b = B()
    nst = [0]
    def stamp(bb, i):
        if stamps == 1 or (stamps == 2 and i in (0, 11, 12, 13, 14, 15)): bb(f"s_memrealtime s[80:81]\ns_waitcnt lgkmcnt(0)\ns_mov_b32 s{84+i}, s80")
    def cstamp(bb, i):
        if stamps == 2: bb(f"s_memtime s[80:81]\ns_memrealtime s[82:83]\ns_waitcnt lgkmcnt(0)\ns_mov_b32 s{85+2*i}, s80\ns_mov_b32 s{86+2*i}, s82")
    def stamp_out(bb):
        if not stamps: return
        bb("s_mov_b64 exec, -1\nv_mov_b32 v3, 0")
        for i in range(16): bb(f"v_writelane_b32 v3, s{84+i}, {i}")
        bb(f"s_mov_b32 s18, 0x800000\ns_lshl_b32 s26, s2, 2\ns_add_u32 s26, s26, s3\ns_lshl_b32 s26, s26, 8\ns_add_u32 s26, s26, 0x400000\nv_lshrrev_b32 v2, 2, v1\nbuffer_store_dword v3, v2, s[16:19], s26 offen")
    b.raw(HDR.rstrip())
    b.raw("; @launch grid=(256,1,1) block=(256,1,1) lds=163840")
    b.raw(f'.amdgcn_target "amdgcn-amd-amdhsa--gfx950"\n.text\n.globl {KN}\n.p2align 8\n.type {KN},@function\n{KN}:')
    if stamps:
        for i in range(16): b(f"s_mov_b32 s{84+i}, 0")
    stamp(b, 0)
    b("s_load_dwordx8 s[36:43], s[0:1], 0\ns_load_dwordx4 s[44:47], s[0:1], 32\ns_load_dwordx2 s[48:49], s[0:1], 48")
    b("s_cmp_lt_u32 s2, 32\ns_cbranch_scc1 L_prod\ns_cmp_ge_u32 s2, 256\ns_cbranch_scc1 L_end")
    b("v_lshrrev_b32 v3, 6, v0\nv_and_b32 v0, 63, v0\nv_lshlrev_b32 v1, 4, v0\nv_readfirstlane_b32 s3, v3")
    b("s_and_b32 s26, s2, 7\ns_sub_u32 s27, s2, 32\ns_lshr_b32 s27, s27, 3\ns_and_b32 s28, s26, 3\ns_lshl_b32 s28, s28, 2\ns_and_b32 s29, s27, 3\ns_add_u32 s30, s28, s29")
    b("s_lshr_b32 s26, s26, 2\ns_mul_i32 s26, s26, 7\ns_lshr_b32 s27, s27, 2\ns_add_u32 s31, s26, s27")
    b("s_mul_i32 s25, s30, 2688\ns_lshl_b32 s24, s31, 4")
    b(f"s_mov_b32 s34, {BIG}\ns_cmp_eq_u32 s30, 0\ns_cselect_b32 s32, s34, 0\ns_cmp_eq_u32 s30, 15\ns_cselect_b32 s33, s34, 0")
    b("v_mov_b32 v20, s32\nv_mov_b32 v21, s33")
    b("v_xor_b32 v8, 32, v1\nv_and_b32 v3, 32, v0\nv_xor_b32 v7, v3, v1")
    b("s_and_b32 s26, s3, 1\ns_lshl_b32 s26, s26, 5\nv_xor_b32 v9, s26, v1")
    b("v_cmp_gt_u32 vcc, 24, v0\nv_cndmask_b32 v3, 0, v20, vcc\nv_or_b32 v6, v3, v1")
    b("v_cmp_gt_u32 vcc, 12, v0\nv_cndmask_b32 v3, 0, v20, vcc\nv_or_b32 v12, v3, v1")
    b("v_cmp_le_u32 vcc, 32, v0\nv_cndmask_b32 v3, 0, v21, vcc\nv_or_b32 v13, v3, v1")
    b("s_lshl_b32 s26, s3, 2\ns_add_u32 s26, s26, s24\ns_sub_u32 s26, s26, 2\ns_add_u32 s27, s24, s3\ns_add_u32 s27, s27, 14")
    for r in range(5):
        b(f"s_add_u32 s28, s26, {r}" if r < 4 else "s_mov_b32 s28, s27")
        b(f"s_mul_i32 s29, s28, 43008\ns_add_u32 s29, s29, s25\ns_cmp_lt_i32 s28, 0\ns_cselect_b32 s{50+r}, s34, s29")
    b("s_lshr_b32 s35, s25, 1")
    for cr in range(3):
        b(f"s_add_u32 s28, s26, {2*cr}" if cr < 2 else "s_mov_b32 s28, s27")
        b(f"s_ashr_i32 s28, s28, 1\ns_mul_i32 s29, s28, 21504\ns_add_u32 s29, s29, s35\ns_cmp_lt_i32 s28, 0\ns_cselect_b32 s{55+cr}, s34, s29")
    b("v_mov_b32 v10, s50\nv_mov_b32 v22, s51\nv_mov_b32 v23, s52\nv_subrev_u32 v22, 384, v22\nv_subrev_u32 v23, 768, v23")
    b("v_cmp_le_u32 vcc, 24, v0\nv_cndmask_b32 v10, v10, v22, vcc\nv_cmp_le_u32 vcc, 48, v0\nv_cndmask_b32 v10, v10, v23, vcc")
    b("v_mov_b32 v22, s53\nv_mov_b32 v11, s54\nv_subrev_u32 v22, 1152, v22\nv_subrev_u32 v11, 1536, v11")
    b("v_cmp_gt_u32 vcc, 32, v0\nv_cndmask_b32 v11, v11, v22, vcc\nv_cmp_gt_u32 vcc, 8, v0\nv_cndmask_b32 v11, v11, v23, vcc")
    b("v_add_u32 v3, 3072, v1\nv_add3_u32 v10, v10, v3, v21\nv_add3_u32 v11, v11, v3, v21")
    b(f"s_mul_i32 s58, s3, {WSZ}\ns_add_u32 s58, s58, {SW}")
    b("s_mul_i32 s26, s3, 3072\ns_mul_i32 s27, s3, 1536\ns_add_u32 s27, s27, 12288")
    srd(b, 12, 40, 18432); srd(b, 4, 36, NX, 384); srd(b, 8, 38, NP, 192)
    stamp(b, 1)
    def dma(v, s_, so, off, tag, fl=ldf): b(f"buffer_load_dwordx4 v{v}, s[{s_}:{s_+3}], {so} offen offset:{off} {fl} lds", tag)
    b(f"s_add_u32 m0, s26, {ST}")
    for n, v in enumerate((1, 7, 8)): dma(v, 12, "s26", 1024 * n, "wl", "")
    b(f"s_add_u32 m0, s27, {ST}")
    dma(9, 12, "s27", 0, "wl", "")
    b("s_bfm_b64 exec, 32, 0"); dma(9, 12, "s27", 1024, "wl", "")
    b(f"s_add_u32 m0, s58, {OQX}\ns_bfm_b64 exec, 56, 0"); dma(11, 4, "0", 1024, "q")
    b("s_mov_b64 exec, -1"); dma(10, 4, "0", 0, "q")
    for cr in range(3):
        b(f"s_add_u32 m0, s58, {OP + 1728*cr}"); dma(12, 8, f"s{55+cr}", 0, "q")
        b("s_bfm_b64 exec, 44, 0"); dma(13, 8, f"s{55+cr}", 1024, "q"); b("s_mov_b64 exec, -1")
    def xrow(bb, r):
        bb(f"s_add_u32 m0, s58, {3072*r}")
        for n, v in enumerate((6, 7, 8)): dma(v, 4, f"s{50+r}", 1024 * n, f"x{r}")
    xrow(b, 0); xrow(b, 1)
    srd(b, 16, 48, NU); srd(b, 20, 44, NX)
    b("v_and_b32 v4, 15, v0\nv_lshrrev_b32 v5, 4, v0")
    b("v_lshlrev_b32 v20, 4, v5\nv_add_u32 v20, s58, v20")
    b("v_lshrrev_b32 v21, 1, v4\nv_mul_u32_u24 v15, 192, v21\nv_add_u32 v15, v15, v20")
    b("v_min_u32 v16, 9, v4\nv_mul_u32_u24 v16, 192, v16\nv_add_u32 v16, v16, v20")
    b("v_lshrrev_b32 v17, 2, v4\nv_min_u32 v17, 2, v17\nv_mul_u32_u24 v17, 1728, v17\nv_add_u32 v17, v17, v20")
    b("v_and_b32 v21, 8, v4\nv_lshlrev_b32 v21, 2, v21\nv_lshlrev_b32 v22, 4, v5\nv_xor_b32 v21, v21, v22\nv_mul_u32_u24 v14, 192, v4\nv_add3_u32 v14, v14, v21, s58")
    b(f"v_bfe_u32 v20, v0, 2, 2\nv_lshl_add_u32 v20, v5, 3, v20\nv_mul_u32_u24 v20, 192, v20\nv_and_b32 v21, 3, v0\nv_lshl_add_u32 v20, v21, 3, v20\nv_add_u32 v20, {ST}, v20")
    b("v_and_b32 v23, 1, v5\nv_lshlrev_b32 v21, 5, v23\nv_add_u32 v18, v20, v21\nv_sub_u32 v19, v20, v21")
    b(f"v_mul_u32_u24 v20, {GS}, v23\nv_lshrrev_b32 v21, 1, v5\nv_mul_u32_u24 v21, 320, v21\nv_add_u32 v20, v20, v21")
    b(f"s_and_b32 s26, s3, 1\ns_mul_i32 s26, s26, {7*NB}\nv_lshl_add_u32 v2, v4, 4, v20\nv_add_u32 v2, s26, v2")
    b("v_cmp_le_u32 vcc, 14, v4\nv_subrev_u32 v21, 2, v4\nv_cndmask_b32 v22, v4, v21, vcc")
    b(f"v_mul_u32_u24 v21, {NB}, v22\nv_add_u32 v20, v20, v21\ns_lshl_b32 s26, s3, 6\ns_lshl_b32 s27, s3, 4\ns_add_u32 s27, s27, 256")
    b(f"v_add_u32 v88, s26, v20\nv_add_u32 v89, s27, v20\nv_add_u32 v90, {2*RS}, v88\nv_add_u32 v91, {2*RS}, v89")
    b("v_cmp_le_u32 s[62:63], 7, v22\nv_subrev_u32 v21, 7, v22\nv_cndmask_b32 v22, v22, v21, s[62:63]")
    b("v_lshlrev_b32 v21, 1, v5\nv_sub_u32 v21, v21, v22")
    for d in range(-1, 3): b(f"v_cmp_eq_u32 s[{66+2*d}:{67+2*d}], {d}, v21")
    b("v_cmp_eq_u32 s[72:73], 6, v22")
    for gg in range(3): b(f"v_cmp_eq_u32 s[{74+2*gg}:{75+2*gg}], {gg}, v5")
    for ph in range(3):
        for jp in range(3):
            c = [bf16(bt[xi[k][ph]][2*jp]) | bf16(bt[xi[k][ph]][2*jp+1]) << 16 for k in range(2)]
            b(f"v_mov_b32 v20, {c[0]:#x}\nv_mov_b32 v23, {c[1]:#x}\nv_cndmask_b32 v{104+jp}, v20, v23, s[62:63]")
        for h in range(2):
            t = 24 + 4*ph + h
            for jp in range(3):
                m = 66 + 2*(jp - h)
                b(f"v_cndmask_b32 v{t}, {0 if jp == 0 else 'v%d' % t}, v{104+jp}, s[{m}:{m+1}]")
        b(f"v_cndmask_b32 v{36+ph}, 0, v106, s[72:73]")
    b("v_and_b32 v20, 1, v4\nv_lshlrev_b32 v20, 4, v20\nv_mov_b32 v21, 0x3f80\nv_lshlrev_b32 v21, v20, v21")
    b("v_lshrrev_b32 v22, 1, v4\nv_lshlrev_b32 v23, 2, v5\nv_sub_u32 v22, v22, v23")
    for h in range(2):
        for d in range(4):
            b(f"v_cmp_eq_u32 vcc, {d - 8*h}, v22\nv_cndmask_b32 v20, 0, v21, vcc\nv_accvgpr_write_b32 a{108+4*h+d}, v20")
    b(f"s_and_b32 s26, s3, 1\ns_lshl_b32 s26, s26, 1\ns_lshr_b32 s27, s3, 1\ns_add_u32 s26, s26, s27\ns_mul_i32 s59, s26, {NU//4}\ns_movk_i32 s60, 3072\ns_mov_b32 s61, {f32(a):#x}")
    b.wait_tag("wl"); b("s_barrier")
    stamp(b, 2)
    WL = lambda kc, j: vr("a", (j*3 + kc) * 4)
    for j in range(6):
        for kc in range(3):
            for h in range(2):
                b(f"ds_read_b64_tr_b16 {vr('a', (j*3+kc)*4 + 2*h, 2)}, v{18 + (j&1)} offset:{(32*kc + 4*h)*192 + 32*j}")
    xrow(b, 2)
    XF = lambda r, kc: vr("a", 72 + 12*(r & 1) + 4*kc)
    PF = lambda kc: vr("a", 96 + 4*kc)
    SEL = lambda h: vr("a", 108 + 4*h)
    M = lambda j: 40 + 4*j
    PC = lambda j: vr("v", 64 + 4*j)
    LA = lambda n: 92 + 4*(n % 3)
    TA = lambda j, ph: 104 + 4*((j & 1)*3 + ph)
    VBC = lambda r, ph, kc: 136 + ((r*2 + ph - 1)*3 + kc)*4
    cvt = lambda d, s_: f"v_cvt_pk_bf16_f32 v{d}, v{s_}, v{s_+1}"
    AR = lambda s_, a_: vr("a", 128 + 12*(s_ % D) + 4*a_)
    def uload(s_, a_): return f"buffer_load_dwordx4 {AR(s_, a_)}, v1, s[16:19], s59 offen offset:{1024*a_} sc1"
    def poll(bb): bb("v_mov_b32 v39, 0\nglobal_load_dword v3, v39, s[46:47] sc1")
    def uinit(bb):
        for s_ in range(D - 1):
            for a_ in range(3): bb(uload(s_, a_))
            bb("s_add_u32 s59, s59, s60")
    b.wait_tag("q")
    for kc in range(3):
        b(f"ds_read_b128 {PF(kc)}, v17 offset:{OP + 1536 + 64*kc}\nds_read_b128 {XF(1, kc)}, v16 offset:{OQX + 64*kc}")
    stamp(b, 3)
    mains = []; chains = []; ln = 0
    def rowload(r, after, before):
        def early_chk(bb):
            bb("s_waitcnt vmcnt(0)"); stamp(bb, 8)
            bb(f"v_readfirstlane_b32 s82, v3\ns_cmp_lt_u32 s82, {NPROD}\ns_cbranch_scc1 L_notyet")
            snap = list(bb.hist)
            uinit(bb); bb("s_branch L_early_done\nL_notyet:"); bb.vm = []; bb.hist = snap; poll(bb); bb("L_early_done:"); bb.vm = []
        c = [F((lambda bb: (bb.wait_tag(f"x{r}"), stamp(bb, 4 + r))) if not (r == 4 and early) else early_chk, after, before)]
        if r % 2 == 0: c += [F(f"ds_read_b128 {PF(kc)}, v15 offset:{OP + 1728*(r//2) + 64*kc}", after, before) for kc in range(3)]
        c += [F(f"ds_read_b128 {XF(r, kc)}, v14 offset:{3072*r + 64*kc}", after, before) for kc in range(3)]
        if r < 2: c.append(F(lambda bb: xrow(bb, r + 3), after, before + 6))
        if r == 3 and early: c.append(F(poll, after, before + 6))
        return c
    for j in range(6):
        la = LA(ln); ln += 1
        mains.append(mfma(vr("v", la), PF(j >> 1), SEL(j & 1), "0"))
        for kc in range(3): mains.append(mfma(vr("v", la), XF(1, kc), WL(kc, j), vr("v", la)))
        e = len(mains) - 1
        chains.append([F(cvt(M(j) + 2 + h, la + 2*h), e, e + 9) for h in range(2)])
    chains.append(rowload(0, len(mains) - 4, len(mains)))
    tl = {}
    for r in range(5):
        base = len(mains)
        lastT = tl.get((r - 1, 5), base - 1)
        if r in (0, 2):
            for j in range(6): mains.append(mfma(PC(j), PF(j >> 1), SEL(j & 1), "0"))
        lend = {}
        def L(j):
            nonlocal ln
            la = LA(ln); ln += 1
            c = PC(j)
            if r == 4: mains.append(mfma(vr("v", la), PF(j >> 1), SEL(j & 1), "0")); c = vr("v", la)
            for kc in range(3):
                mains.append(mfma(vr("v", la), XF(r, kc), WL(kc, j), c)); c = vr("v", la)
            lend[j] = (len(mains) - 1, la)
        def T(j):
            e, la = lend[j]; t0 = len(mains)
            chains.append([F(cvt(M(j) + h, la + 2*h), e, t0 - 1) for h in range(2)])
            for ph in range(3): mains.append(mfma(vr("v", TA(j, ph)), vr("v", M(j)), vr("v", 24 + 4*ph), "0"))
            tl[(r, j)] = len(mains) - 1
        seq = "L0 L1 L2 T0 L3 T1 L4 T2 L5 T3 T4 T5".split()
        for s_ in seq: (L if s_[0] == "L" else T)(int(s_[1]))
        c = []
        for ph in range(3):
            m = 74 + 2*(r >> 1)
            c.append(F(f"v_cndmask_b32 v{26 + 4*ph + (r & 1)}, 0, v{36+ph}, s[{m}:{m+1}]", lastT, tl[(r, 0)] - 4))
            c.append(F(f"v_mov_b32 v{27 + 4*ph - (r & 1)}, 0", lastT, tl[(r, 0)] - 4))
        chains.append(c)
        if r < 4: chains.append(rowload(r + 1, lend[5][0], len(mains) - 3))
    keys = sorted(tl)
    for n, (r, j) in enumerate(keys):
        kc = j >> 1
        for ph in range(3):
            e = tl[(r, j)] - 2 + ph
            dl = tl[keys[n + 2]] - 2 + ph if n + 2 < len(keys) else 10**9 - 3 + ph
            d = (128 + 4*((r*3 + kc) & 1) if ph == 0 else VBC(r, ph, kc)) + 2*(j & 1)
            c = [F(cvt(d + h, TA(j, ph) + 2*h), e, dl) for h in range(2)]
            if ph == 0:
                if j & 1:
                    c0 += c; c0.append(F(f"ds_write_b128 v{88 + (r == 4)}, {vr('v', d - 2)} offset:{640*kc + 16*(r & 3)}", e, dl))
                else: c0 = c; chains.append(c0)
            else: chains.append(c)
    sched(b, mains, chains)
    stamp(b, 9)
    if early: b(f"s_cmp_ge_u32 s82, {NPROD}\ns_cbranch_scc1 L_go")
    else: poll(b)
    snap = list(b.hist)
    b("s_mov_b32 s83, 0\nL_spin:\ns_waitcnt vmcnt(0)")
    b(f"v_readfirstlane_b32 s82, v3\ns_cmp_ge_u32 s82, {NPROD}\ns_cbranch_scc1 L_flag\ns_add_u32 s83, s83, 1\ns_cmp_ge_u32 s83, 0x10000\ns_cbranch_scc1 L_flag")
    poll(b); b("s_branch L_spin\nL_flag:"); b.vm = []
    uinit(b); b("L_go:"); b.hist = snap
    stamp(b, 10)
    b.waitcnt(lg=0); b("s_barrier")
    stamp(b, 11)
    BF = lambda s_, t: vr("a", 28*(s_ & 1) + 4*t)
    def bread(s_, t):
        di, kc = divmod(s_ % 15, 3)
        return f"ds_read_b128 {BF(s_, t)}, v2 offset:{t*NB + 640*kc + 16*di}"
    for t in range(7): b(bread(0, t))
    mains = []; pos = {}
    ACC = (X, Y, Z)
    tiles = [(a_, t) for a_ in range(3) for t in range(7)] if order == "a" else [(a_, t) for t in range(7) for a_ in range(3)]
    tix = lambda a_, t: 4*(a_*7 + t)
    for s_ in range(45):
        ph = s_ // 15
        for a_, t in tiles:
            c = vr("v", ACC[ph] + tix(a_, t))
            if s_ % 15 == 0: c = "0" if ph == 0 else vr("v", ACC[ph - 1] + tix(a_, t))
            pos[(s_, a_, t)] = len(mains)
            mains.append(mfma(vr("v", ACC[ph] + tix(a_, t)), AR(s_, a_), BF(s_, t), c))
    S = lambda s_: 21 * s_
    def bar(bb): bb("s_barrier")
    cb = []; ca = []
    for s_ in range(1, 45):
        if s_ == 15: cb.append(F(lambda bb: (bb.wait_tag("vw"), bar(bb)), S(14) - 1, S(14) + 1))
        if s_ % 15 == 0: cb.append(F(f"v_add_u32 v2, {RS}, v2", S(s_ - 1) - 1, S(s_)))
        for t in range(7): cb.append(F(bread(s_, t), S(s_ - 1) + 2*t - 1, S(s_ - 1) + 2*t + 6))
    for s_ in range(D - 1, 45):
        w0 = S(s_ - D + 1)
        for a_ in range(3): ca.append(F(uload(s_, a_), w0 + 6*a_ + 1, w0 + 6*a_ + 7))
        ca.append(F("s_add_u32 s59, s59, s60", w0 + 14, w0 + 21))
    cw = []; n = 0
    for ph in (1, 2):
        for r in range(5):
            for kc in range(3):
                p0 = S(n // 3) + 15 + 2*(n % 3); n += 1
                cw.append(F(f"ds_write_b128 v{88 + (r == 4) + 2*(ph == 2)}, {vr('v', VBC(r, ph, kc))} offset:{(RS if ph == 1 else 0) + 640*kc + 16*(r & 3)}", p0, S(13), "vw"))
    ce = [F(f"s_mul_i32 s26, s3, 21504\nv_add_u32 v0, s26, v1\ns_xor_b32 s27, s3, 1\ns_mul_i32 s27, s27, 21504\nv_add_u32 v3, s27, v1", S(29), S(30))]
    ce.append(F(bar, S(30), S(30) + 2))
    for n, (a_, t) in enumerate(tiles):
        o = tix(a_, t); p0 = max(pos[(30, a_, t)] + 2, S(30) + 4 + 4*n)
        for e in range(4): ce.append(F(f"v_fma_f32 v{Y+o+e}, 2.0, v{X+o+e}, -v{Y+o+e}", p0, S(36)))
        ce.append(F(f"ds_write_b128 v0, {vr('v', Y + o)} offset:{256*o}", p0, S(36), "ex"))
    ce.append(F(lambda bb: (bb.wait_tag("ex"), bar(bb)), S(35), S(36)))
    for n, (a_, t) in enumerate(tiles):
        ce.append(F(f"ds_read_b128 {vr('v', X + tix(a_, t))}, v3 offset:{256*tix(a_, t)}", S(35) + 2*n, S(39), "er"))
    ce.append(F(lambda bb: (bb.wait_tag("er"), bar(bb)), S(38), S(39)))
    ci = []
    for n, (a_, t) in enumerate(tiles):
        s_ = 39 + n % 5; o = tix(a_, t)
        ci.append([F(f"v_fmac_f32 v{Z+o+e}, s61, v{X+o+e}", pos[(s_, a_, t)] + 3, pos[(s_ + 1, a_, t)] - 2) for e in range(4)])
    co = [F(f"v_lshrrev_b32 v{Y}, 4, v1\nv_and_b32 v{Y+1}, 15, v{Y}\nv_lshrrev_b32 v{Y}, 4, v{Y}", S(40), S(44)),
          F(f"v_mul_u32_u24 v{Y+1}, {OPITCH}, v{Y+1}\nv_lshl_add_u32 v0, v{Y}, 3, v{Y+1}", S(40), S(44)),
          F(f"s_and_b32 s26, s3, 1\ns_mul_i32 s26, s26, 192\ns_lshr_b32 s27, s3, 1", S(40), S(44)),
          F(f"s_mul_i32 s27, s27, 96\ns_add_u32 s26, s26, s27\nv_add_u32 v0, s26, v0", S(40), S(44)),
          F(f"s_mul_i32 s26, s3, {4*OPITCH}\nv_add_u32 v3, s26, v1", S(40), S(44)),
          F(f"s_lshl_b32 s26, s3, 2\ns_add_u32 s26, s26, s24\ns_mul_i32 s26, s26, 43008\ns_add_u32 s26, s26, s25", S(40), S(44))]
    cf = []
    for n, (a_, t) in enumerate(tiles):
        o = tix(a_, t); e = pos[(44, a_, t)]; d = Y + 4 + 2*n
        cf.append([F(cvt(d, Z + o), e, 10**9 - 30 + n), F(cvt(d + 1, Z + o + 2), e, 10**9 - 30 + n),
                   F(f"ds_write_b64 v0, {vr('v', d, 2)} offset:{384*t + 32*a_}", e, 10**9 - 30 + n)])
    cs = [F(lambda bb, i=i: cstamp(bb, i), p - 2, p) for i, p in enumerate((S(1), S(15), S(30), S(44)))]
    sched(b, mains, [cb, ca, cw, ce, co, cs] + ci + cf)
    stamp(b, 12)
    b.waitcnt(lg=0); b("s_barrier\ns_bfm_b64 exec, 56, 0")
    stamp(b, 13)
    for rr in range(4):
        for n in range(3): b(f"ds_read_b128 {vr('v', X + 4*(3*rr + n))}, v3 offset:{OPITCH*rr + 896*n}")
    for rr in range(4):
        for n in range(3): b(f"buffer_store_dwordx4 {vr('v', X + 4*(3*rr + n))}, v1, s[20:23], s26 offen offset:{896*n} {stf}")
        if rr < 3: b("s_add_u32 s26, s26, 43008")
    if stamps:
        stamp(b, 14); b("s_waitcnt vmcnt(0)"); stamp(b, 15); stamp_out(b)
    b("L_end:\ns_endpgm")
    b.hist = []; b.reset(); b.lg = [I("s_load_dwordx16 s[36:51], s[0:1], 0")]
    b("L_prod:")
    b("v_lshrrev_b32 v3, 6, v0\nv_and_b32 v0, 63, v0\nv_lshlrev_b32 v1, 4, v0\nv_readfirstlane_b32 s3, v3")
    b(f"s_cmp_eq_u32 s3, 3\ns_cbranch_scc1 L_pf\ns_cmp_ge_u32 s2, {NPROD}\ns_cbranch_scc1 L_end2")
    b("s_lshr_b32 s24, s2, 1\ns_and_b32 s25, s2, 1\ns_mul_i32 s26, s24, 171\ns_lshr_b32 s26, s26, 9\ns_mul_i32 s27, s26, 3\ns_sub_u32 s27, s24, s27")
    b("s_mul_i32 s28, s26, 92160\ns_mul_i32 s27, s27, 6144\ns_add_u32 s28, s28, s27\ns_mul_i32 s27, s25, 3\ns_add_u32 s27, s27, s3\ns_lshl_b32 s27, s27, 5\ns_add_u32 s28, s28, s27")
    b("v_lshrrev_b32 v2, 1, v0\nv_mul_u32_u24 v2, 192, v2\nv_and_b32 v3, 1, v0\nv_lshl_add_u32 v2, v3, 4, v2")
    b("s_mul_i32 s29, s3, 5120\nv_lshl_add_u32 v4, v0, 3, s29")
    srd(b, 12, 42, 460800)
    stamp(b, 1)
    for dj in range(5):
        b(f"s_add_u32 m0, s29, {1024*dj}\nbuffer_load_dwordx4 v2, s[12:15], s28 offen lds\ns_add_u32 s28, s28, 18432", f"w{dj}")
    srd(b, 16, 48, NU)
    b(f"s_mul_i32 s30, s25, {NU//4}\ns_mul_i32 s27, s24, 3072\ns_add_u32 s30, s30, s27\ns_lshl_b32 s27, s3, 10\ns_add_u32 s30, s30, s27")
    for k in range(2):
        for j in range(5): b(f"s_mov_b32 s{50 + 10*k + 2*j}, {f32(G[xi[k][0]][j]):#x}")
    b(f"s_mov_b32 s70, {f32(G[0][0]):#x}\ns_mov_b32 s72, 0xffff0000")
    assert G[0][0] == G[5][4]
    for k in range(2):
        sg = 1 if k == 0 else -1
        assert all(G[xi[k][1]][j] == sg * (-1)**j * G[xi[k][0]][j] for j in range(5))
    W = lambda dj: 8 + 4*dj
    Fp = lambda dj, d: 32 + 8*dj + 2*d
    for dj in range(5):
        b.wait_tag(f"w{dj}")
        for h in range(2): b(f"ds_read_b64_tr_b16 {vr('v', W(dj) + 2*h, 2)}, v4 offset:{1024*dj + 512*h}")
    stamp(b, 2)
    for dj in range(5):
        for d in range(4): b(f"v_lshlrev_b32 v{Fp(dj, d)}, 16, v{W(dj)+d}\nv_and_b32 v{Fp(dj, d)+1}, s72, v{W(dj)+d}")
    p2 = lambda r: vr("v", r, 2)
    def ust(r, k, ph): b(f"s_add_u32 s31, s30, {k*(NU//2) + ph*46080}\nbuffer_store_dwordx4 {vr('v', r)}, v1, s[16:19], s31 offen sc1")
    for k in range(2):
        E, O, R = 80, 88, 96 + 24*k
        sc_ = lambda j: f"s[{50 + 10*k + 2*j}:{51 + 10*k + 2*j}]"
        for j in range(5):
            t = E if j % 2 == 0 else O
            for d in range(4):
                if j < 2: b(f"v_pk_mul_f32 {p2(t + 2*d)}, {p2(Fp(j, d))}, {sc_(j)} op_sel_hi:[1,0]")
                else: b(f"v_pk_fma_f32 {p2(t + 2*d)}, {p2(Fp(j, d))}, {sc_(j)}, {p2(t + 2*d)} op_sel_hi:[1,0,1]")
        for d in range(4): b(f"v_pk_add_f32 {p2(R + 2*d)}, {p2(E + 2*d)}, {p2(O + 2*d)}")
        for d in range(4): b(cvt(R + 16 + d, R + 2*d))
        ust(R + 16, k, 0)
        n_ = "neg_lo:[0,1] neg_hi:[0,1]" if k == 0 else "neg_lo:[1,0] neg_hi:[1,0]"
        for d in range(4): b(f"v_pk_add_f32 {p2(R + 8 + 2*d)}, {p2(E + 2*d)}, {p2(O + 2*d)} {n_}")
        for d in range(4): b(cvt(R + 20 + d, R + 8 + 2*d))
        ust(R + 20, k, 1)
    for k in range(2):
        if G[0][0] == 1: ust(W(4*k), k, 2)
        else:
            for d in range(4): b(f"v_pk_mul_f32 {p2(80 + 2*d)}, {p2(Fp(4*k, d))}, s[70:71] op_sel_hi:[1,0]")
            for d in range(4): b(cvt(144 + 4*k + d, 80 + 2*d))
            ust(144 + 4*k, k, 2)
    stamp(b, 3)
    b("s_waitcnt vmcnt(0)"); stamp(b, 4); b("s_barrier")
    b("s_cmp_lg_u32 s3, 0\ns_cbranch_scc1 L_pdone")
    b("v_mov_b32 v2, 0\nv_mov_b32 v3, 1\ns_mov_b64 exec, 1\nglobal_atomic_add v2, v3, s[46:47] sc1")
    if stamps: b("s_waitcnt vmcnt(0)"); stamp(b, 5)
    b("L_pdone:")
    stamp_out(b)
    b("L_end2:\ns_endpgm")
    b("L_pf:")
    if cpf:
        b(f"s_getpc_b64 s[4:5]\nL_pc:\ns_sub_u32 s4, s4, L_pc-{KN}\ns_subb_u32 s5, s5, 0\ns_mov_b32 s6, L_pc-{KN}\ns_mov_b32 s7, 0x20000")
        b("s_lshr_b32 s26, s2, 3\ns_lshl_b32 s26, s26, 13\nv_lshlrev_b32 v2, 3, v1\nbuffer_load_dword v3, v2, s[4:7], s26 offen\ns_waitcnt vmcnt(0)")
    b("s_endpgm")
    b.raw(f'''.section .rodata,"a"
.p2align 6
.amdhsa_kernel {KN}
  .amdhsa_next_free_vgpr 512
  .amdhsa_next_free_sgpr 102
  .amdhsa_accum_offset 256
  .amdhsa_group_segment_fixed_size 0
  .amdhsa_kernarg_size 56
  .amdhsa_user_sgpr_count 2
  .amdhsa_user_sgpr_kernarg_segment_ptr 1
  .amdhsa_system_sgpr_workgroup_id_x 1
  .amdhsa_float_denorm_mode_32 3
.end_amdhsa_kernel''')
    print("nops", b.nops, "waits", b.waits, "lines", len(b.out), file=sys.stderr)
    return b.text()

if __name__ == "__main__":
    kw = {}
    for x in sys.argv[2:]:
        k, v = x.split("=", 1)
        kw[k] = Fr(v) if k == "a" else (int(v) if v.lstrip("-").isdigit() else v)
    open(sys.argv[1], "w").write(gen(**kw))
```

```python
import sys
from gen_v1 import *
OQP = OP + 4608
OS0, OSS, OSP = 86016, 6400, 400
INF = 10**9

def gen(a=Fr(2, 3), NF=27, n=6, stamps=0, ldf="nt", stf="sc1", cpf=1, rate=5, lead=10, wlf="", qgap=3, name=KN):
    bt, G, xi = wino(a)
    b = B()
    def stamp(bb, i):
        if stamps == 1 or (stamps == 2 and i in (0, 11, 12, 13, 14, 15)): bb(f"s_memrealtime s[80:81]\ns_waitcnt lgkmcnt(0)\ns_mov_b32 s{84+i}, s80")
    def cstamp(bb, i):
        if stamps == 2: bb(f"s_memtime s[80:81]\ns_memrealtime s[82:83]\ns_waitcnt lgkmcnt(0)\ns_mov_b32 s{85+2*i}, s80\ns_mov_b32 s{86+2*i}, s82")
    def stamp_out(bb):
        if not stamps: return
        bb("s_mov_b64 exec, -1\nv_mov_b32 v3, 0")
        for i in range(16): bb(f"v_writelane_b32 v3, s{84+i}, {i}")
        bb("v_mbcnt_lo_u32_b32 v2, -1, 0\nv_mbcnt_hi_u32_b32 v2, -1, v2\ns_lshl_b32 s26, s2, 2\ns_add_u32 s26, s26, s3\ns_lshl_b32 s26, s26, 8\ns_add_u32 s26, s26, 0x400000\nv_lshl_add_u32 v2, v2, 2, s26\nglobal_store_dword v2, v3, s[48:49]")
    b.raw(HDR.rstrip())
    b.raw("; @launch grid=(256,1,1) block=(256,1,1) lds=163840")
    b.raw(f'.amdgcn_target "amdgcn-amd-amdhsa--gfx950"\n.text\n.globl {KN}\n.p2align 8\n.type {KN},@function\n{KN}:')
    if stamps:
        for i in range(16): b(f"s_mov_b32 s{84+i}, 0")
    stamp(b, 0)
    b("s_load_dwordx8 s[36:43], s[0:1], 0\ns_load_dwordx4 s[44:47], s[0:1], 32\ns_load_dwordx2 s[48:49], s[0:1], 48")
    b("s_cmp_lt_u32 s2, 32\ns_cbranch_scc1 L_prod\ns_cmp_ge_u32 s2, 256\ns_cbranch_scc1 L_end")
    b("v_lshrrev_b32 v3, 6, v0\nv_and_b32 v0, 63, v0\nv_lshlrev_b32 v1, 4, v0\nv_readfirstlane_b32 s3, v3")
    b("s_sub_u32 s27, s2, 32\ns_and_b32 s28, s2, 3\ns_lshl_b32 s28, s28, 2\ns_bfe_u32 s29, s27, 0x20003\ns_add_u32 s30, s28, s29")
    b("s_bfe_u32 s26, s2, 0x10002\ns_mul_i32 s26, s26, 7\ns_lshr_b32 s27, s27, 5\ns_add_u32 s31, s26, s27")
    b("s_mul_i32 s25, s30, 2688\ns_lshl_b32 s24, s31, 4")
    b(f"s_mov_b32 s34, {BIG}\ns_cmp_eq_u32 s30, 0\ns_cselect_b32 s32, s34, 0\ns_cmp_eq_u32 s30, 15\ns_cselect_b32 s33, s34, 0")
    b("v_xor_b32 v8, 32, v1\nv_and_b32 v3, 32, v0\nv_xor_b32 v7, v3, v1")
    b("s_and_b32 s26, s3, 1\ns_lshl_b32 s26, s26, 5\nv_xor_b32 v9, s26, v1")
    b("s_lshl_b32 s26, s3, 2\ns_add_u32 s26, s26, s24\ns_add_u32 s27, s24, s3\ns_add_u32 s27, s27, 14\ns_lshr_b32 s35, s25, 1")
    b("s_mul_i32 s52, s26, 43008\ns_lshr_b32 s56, s52, 2\ns_add_u32 s52, s52, s25\ns_add_u32 s56, s56, s35")
    b("s_add_u32 s53, s52, 43008\ns_sub_u32 s51, s52, 43008\ns_sub_u32 s50, s52, 86016\ns_sub_u32 s55, s56, 21504")
    b("s_cmp_eq_u32 s26, 0\ns_cselect_b32 s50, s34, s50\ns_cselect_b32 s51, s34, s51\ns_cselect_b32 s55, s34, s55")
    b("s_mul_i32 s54, s27, 43008\ns_add_u32 s54, s54, s25\ns_lshr_b32 s27, s27, 1\ns_mul_i32 s57, s27, 21504\ns_add_u32 s57, s57, s35")
    b("v_or_b32 v20, s33, v1\nv_mov_b32 v6, v1\nv_mov_b32 v12, v1")
    for r in range(5): b(f"s_add_u32 s{62+r}, s{50+r}, {3072 - 384*r}")
    for c in range(3): b(f"s_add_u32 s{67+c}, s{55+c}, {1536 - 192*c}")
    b("v_add_u32 v10, s64, v20\nv_add_u32 v11, s66, v20\nv_add_u32 v13, s69, v20")
    b("s_bfm_b64 exec, 48, 0\nv_add_u32 v10, s63, v20\ns_bfm_b64 exec, 32, 0\nv_add_u32 v11, s65, v20")
    b("s_bfm_b64 exec, 24, 0\nv_add_u32 v10, s62, v20\nv_add_u32 v13, s68, v20\nv_or_b32 v6, s32, v1")
    b("s_bfm_b64 exec, 12, 0\nv_add_u32 v13, s67, v20\nv_or_b32 v12, s32, v1\ns_bfm_b64 exec, 8, 0\nv_add_u32 v11, s64, v20\ns_mov_b64 exec, -1")
    b(f"s_mul_i32 s58, s3, {WSZ}\ns_add_u32 s58, s58, {SW}")
    b("s_mul_i32 s28, s3, 3072\ns_lshr_b32 s29, s28, 1\ns_add_u32 s29, s29, 12288")
    for r, nn in ((12, 18432), (4, NX + 384), (8, NP + 192)): b(f"s_mov_b32 s{r+2}, {nn}\ns_mov_b32 s{r+3}, 0x20000")
    b(f"s_add_u32 m0, s28, {ST}\ns_mov_b32 s12, s40\ns_mov_b32 s13, s41")
    stamp(b, 1)
    def dma(bb, v, s_, so, off, tag, fl=ldf, lanes=None):
        if lanes: bb(f"s_bfm_b64 exec, {lanes}, 0")
        bb(f"buffer_load_dwordx4 v{v}, s[{s_}:{s_+3}], {so} offen offset:{off} {fl} lds", tag)
        if lanes: bb("s_mov_b64 exec, -1")
    m0 = lambda off: f"s_add_u32 m0, s58, {off}"
    xd = lambda r, nn: f"buffer_load_dwordx4 v{6+nn}, s[4:7], s{50+r} offen offset:{1024*nn} {ldf} lds"
    def prow(bb, c):
        bb(m0(OP + 1536*c)); dma(bb, 12, 8, f"s{55+c}", 0, f"x{2*c}"); dma(bb, 21, 8, f"s{55+c}", 1024, f"x{2*c}", lanes=32)
    first = [lambda: dma(b, 1, 12, "s28", 0, "wl", wlf), lambda: dma(b, 7, 12, "s28", 1024, "wl", wlf), lambda: dma(b, 8, 12, "s28", 2048, "wl", wlf),
             lambda: (b(f"s_add_u32 m0, s29, {ST}\ns_sub_u32 s4, s36, 384\ns_subb_u32 s5, s37, 0"), dma(b, 9, 12, "s29", 0, "wl", wlf)),
             lambda: dma(b, 9, 12, "s29", 1024, "wl", wlf, 32),
             lambda: (b(m0(OQX) + "\ns_sub_u32 s8, s38, 192\ns_subb_u32 s9, s39, 0"), dma(b, 10, 4, "0", 0, "q")), lambda: dma(b, 11, 4, "0", 1024, "q", lanes=56),
             lambda: (b(m0(OQP)), dma(b, 13, 8, "0", 0, "q", lanes=36)),
             lambda: (b(m0(OP)), dma(b, 12, 8, "s55", 0, "x0")), lambda: dma(b, 1, 8, "s55", 1024, "x0", lanes=32)]
    for r in range(2):
        for nn in range(3): first.append(lambda r=r, nn=nn: b((m0(3072*r) + "\n" if nn == 0 else "") + xd(r, nn), f"x{r}"))
    su = []
    S_ = lambda t: su.extend(t.split("\n"))
    S_("v_and_b32 v4, 15, v0\nv_lshrrev_b32 v5, 4, v0\nv_lshl_add_u32 v20, v5, 4, s58\ns_movk_i32 s26, 192")
    S_("v_lshrrev_b32 v92, 1, v4\nv_mad_u32_u24 v15, v92, s26, v20\nv_min_u32 v16, 9, v4\nv_mad_u32_u24 v16, v16, s26, v20")
    S_("v_lshrrev_b32 v17, 2, v4\nv_min_u32 v17, 2, v17\nv_mad_u32_u24 v17, v17, s26, v20")
    S_("v_and_b32 v22, 8, v4\nv_lshlrev_b32 v22, 2, v22\nv_xor_b32 v22, v22, v20\nv_mad_u32_u24 v14, v4, s26, v22")
    S_(f"v_bfe_u32 v20, v0, 2, 2\nv_lshl_add_u32 v20, v5, 3, v20\nv_and_b32 v22, 3, v0\nv_lshlrev_b32 v22, 3, v22\nv_mad_u32_u24 v20, v20, s26, v22\nv_add_u32 v20, {ST}, v20")
    S_("v_and_b32 v23, 1, v5\nv_lshlrev_b32 v22, 5, v23\nv_add_u32 v18, v20, v22\nv_sub_u32 v19, v20, v22")
    S_(f"v_cmp_le_u32 vcc, 14, v4\nv_mul_u32_u24 v20, {GS}, v23\nv_lshrrev_b32 v22, 1, v5\nv_mul_u32_u24 v22, 320, v22\nv_add_u32 v20, v20, v22")
    S_(f"v_subrev_u32 v23, 2, v4\nv_cndmask_b32 v93, v4, v23, vcc\ns_and_b32 s27, s3, 1\ns_mul_i32 s26, s27, {7*NB}\nv_cmp_le_u32 s[62:63], 7, v93\nv_lshl_add_u32 v2, v4, 4, v20\nv_add_u32 v2, s26, v2")
    S_(f"v_subrev_u32 v23, 7, v93\nv_cndmask_b32 v94, v93, v23, s[62:63]\nv_lshlrev_b32 v23, 1, v5\nv_sub_u32 v23, v23, v94")
    for d in range(-1, 3): S_(f"v_cmp_eq_u32 s[{66+2*d}:{67+2*d}], {d}, v23")
    S_("v_cmp_eq_u32 s[72:73], 6, v94")
    for gg in range(3): S_(f"v_cmp_eq_u32 s[{74+2*gg}:{75+2*gg}], {gg}, v5")
    for ph in range(3):
        for jp in range(3):
            c = [bf16(bt[xi[k][ph]][2*jp]) | bf16(bt[xi[k][ph]][2*jp+1]) << 16 for k in range(2)]
            S_(f"v_mov_b32 v22, {c[0]:#x}\nv_mov_b32 v23, {c[1]:#x}\nv_cndmask_b32 v{104+jp}, v22, v23, s[62:63]")
        for h in range(2):
            t = 24 + 4*ph + h
            for jp in range(3):
                m = 66 + 2*(jp - h)
                S_(f"v_cndmask_b32 v{t}, {0 if jp == 0 else 'v%d' % t}, v{104+jp}, s[{m}:{m+1}]")
        S_(f"v_cndmask_b32 v{36+ph}, 0, v106, s[72:73]")
    S_("v_and_b32 v22, 1, v4\nv_lshlrev_b32 v22, 4, v22\nv_mov_b32 v23, 0x3f80\nv_lshlrev_b32 v23, v22, v23\nv_lshlrev_b32 v22, 2, v5\nv_sub_u32 v22, v92, v22")
    for h in range(2):
        for d in range(4): S_(f"v_cmp_eq_u32 s[{64+2*d}:{65+2*d}], {d - 8*h}, v22")
        for d in range(4): S_(f"v_cndmask_b32 v{96+d}, 0, v23, s[{64+2*d}:{65+2*d}]")
        for d in range(4): S_(f"v_accvgpr_write_b32 a{108+4*h+d}, v{96+d}")
    per = -(-len(su) // 11)
    for i, f in enumerate(first):
        f()
        if i >= 4:
            for t in su[:per]: b(t)
            su = su[per:]
    for t in su: b(t)
    b(f"v_mul_u32_u24 v22, {NB}, v93\ns_lshl_b32 s26, s3, 6\nv_add3_u32 v0, v20, v22, s26\ns_lshl_b32 s26, s3, 4\ns_add_u32 s26, s26, 256\nv_add3_u32 v3, v20, v22, s26")
    b(f"s_lshl_b32 s27, s27, 1\ns_lshr_b32 s26, s3, 1\ns_add_u32 s26, s26, s27\ns_mul_i32 s26, s26, {NU//4}\ns_add_u32 s26, s26, 4096\nv_mov_b32 v21, v1\nv_add_u32 v1, s26, v1\nv_mov_b32 v23, 0\ns_mov_b32 s61, {f32(a):#x}")
    srd(b, 20, 44, NX)
    b.wait_tag("wl"); b("s_barrier")
    stamp(b, 2)
    WL = lambda kc, j: vr("a", (j*3 + kc) * 4)
    trs = [f"ds_read_b64_tr_b16 {vr('a', (j*3+kc)*4 + 2*h, 2)}, v{18 + (j&1)} offset:{(32*kc + 4*h)*192 + 32*j}" for j in range(6) for kc in range(3) for h in range(2)]
    for t in trs[:8]: b(t)
    prow(b, 1)
    for t in trs[8:12]: b(t)
    b(m0(3072*2))
    for nn in range(3):
        b(xd(2, nn), "x2")
        for t in trs[12 + 4*nn:16 + 4*nn]: b(t)
    XF = lambda r, kc: vr("a", 72 + 12*(r & 1) + 4*kc)
    PF = lambda kc: vr("a", 96 + 4*kc)
    SEL = lambda h: vr("a", 108 + 4*h)
    M = lambda j: 40 + 4*j
    PC = lambda j: vr("v", 64 + 4*j)
    LA = lambda k: 88 + 4*(k % 4)
    TA = lambda k: 104 + 4*(k % 6)
    VBC = lambda r, ph, kc: 76 + 60*ph + (r*3 + kc)*4
    cvt = lambda d, s_: f"v_cvt_pk_bf16_f32 v{d}, v{s_}, v{s_+1}"
    AR = lambda f: vr("a", 116 + 4*(f % NF))
    uload = lambda f: f"global_load_dwordx4 {AR(f)}, v1, s[16:17] offset:{1024*(f % 8) - 4096} sc1"
    poll = "global_load_dword v39, v23, s[46:47] sc1"
    b.wait_tag("q")
    for kc in range(3): b(f"ds_read_b128 {PF(kc)}, v17 offset:{OQP + 64*kc}")
    for kc in range(3): b(f"ds_read_b128 {XF(1, kc)}, v16 offset:{OQX + 64*kc}")
    stamp(b, 3)
    mains = []; chains = []; marks = {}; ln = 0; tn = 0; tpos = []
    def rowload(r, after, before, pafter):
        c = [F(lambda bb: (bb.wait_tag(f"x{r}"), stamp(bb, 4 + r)), after, before)]
        c += [F(f"ds_read_b128 {XF(r, kc)}, v14 offset:{3072*r + 64*kc}", after, before) for kc in range(3)]
        p = [F(f"ds_read_b128 {PF(kc)}, v15 offset:{OP + 1536*(r//2) + 64*kc}", pafter, before) for kc in range(3)] if r % 2 == 0 else []
        return c[:1] + p + c[1:] if pafter <= after else c + p
    for j in range(6):
        la = LA(ln); ln += 1
        mains.append(mfma(vr("v", la), PF(j >> 1), SEL(j & 1), "0"))
        for kc in range(3): mains.append(mfma(vr("v", la), XF(1, kc), WL(kc, j), vr("v", la)))
        e = len(mains) - 1
        chains.append([F(cvt(M(j) + 2 + h, la + 2*h), e, e + 13) for h in range(2)])
    chains.append([F(t, i - 1, 13 + 4*(i // 6)) for i, t in enumerate(trs[24:])])
    chains.append(rowload(0, 13, 24, 20))
    rstart = []
    for r in range(5):
        rstart.append(len(mains)); lastT = len(mains) - 1
        if r in (0, 2):
            for j in range(6): mains.append(mfma(PC(j), PF(j >> 1), SEL(j & 1), "0"))
        lend = {}; tfirst = {}
        def L(j):
            nonlocal ln
            la = LA(ln); ln += 1
            c = PC(j)
            if r == 4: mains.append(mfma(vr("v", la), PF(j >> 1), SEL(j & 1), "0")); c = vr("v", la)
            for kc in range(3):
                mains.append(mfma(vr("v", la), XF(r, kc), WL(kc, j), c)); c = vr("v", la)
            lend[j] = (len(mains) - 1, la)
        def T(j, phs):
            nonlocal tn
            for ph in phs:
                if ph == 0:
                    e, la = lend[j]; tfirst[j] = len(mains)
                    chains.append([F(cvt(M(j) + h, la + 2*h), e, len(mains) - 1) for h in range(2)])
                tpos.append((len(mains), r, j, ph, TA(tn)))
                mains.append(mfma(vr("v", TA(tn)), vr("v", M(j)), vr("v", 24 + 4*ph), "0")); tn += 1
        if r < 4:
            for s_ in "L0 L1 L2 L3 T0 L4 T1 L5 T2 T3 T4 T5".split(): L(int(s_[1])) if s_[0] == "L" else T(int(s_[1]), (0, 1, 2))
        else:
            for s_ in "L0 L1 L2 T0 L3 T1 L4 T2 L5 T3".split(): L(int(s_[1])) if s_[0] == "L" else T(int(s_[1]), (0,))
            T(0, (1,)); T(1, (1,)); T(4, (0,)); T(2, (1,)); T(3, (1,)); T(5, (0,)); lastphi0 = len(mains) - 1
            T(4, (1,)); T(5, (1,))
            for j in range(6): T(j, (2,))
        c = []
        for ph in range(3):
            m = 74 + 2*(r >> 1)
            c += FL(f"v_cndmask_b32 v{26 + 4*ph + (r & 1)}, 0, v{36+ph}, s[{m}:{m+1}]\nv_mov_b32 v{27 + 4*ph - (r & 1)}, 0", lastT, tfirst[0] - 2)
        chains.append(c)
        if r < 4: chains.append(rowload(r + 1, len(mains) - 16, len(mains) - 4, len(mains) - 16))
    P0 = len(mains)
    chains.append(FL(m0(3072*3), rstart[0], rstart[0] + 8) + [F(xd(3, nn), rstart[0] + 1 + 2*nn, rstart[0] + 12, "x3") for nn in range(3)]
                  + [F(lambda bb: prow(bb, 2), rstart[1], rstart[1] + 4, big=True)]
                  + FL(m0(3072*4), rstart[1] + 2, rstart[1] + 8) + [F(xd(4, nn), rstart[1] + 3 + 2*nn, rstart[1] + 14, "x4") for nn in range(3)]
                  + [F(poll, rstart[3] + 4, rstart[3] + 8)]
                  + FL(f"v_readfirstlane_b32 s82, v39", rstart[4], rstart[4] + 3)
                  + [F(lambda bb: bb(f"s_cmp_ge_u32 s82, {NPROD}\ns_cselect_b64 s[16:17], s[48:49], s[36:37]"), rstart[4] + 2, rstart[4] + 5), F(poll, rstart[4] + 3, rstart[4] + 7)]
                  + [F(uload(f), rstart[4] + 4 + 3*f, lastphi0 + 1) for f in range(8)])
    wchain = []
    for k, (p, r, j, ph, ta) in enumerate(tpos):
        kc = j >> 1
        dl = tpos[k + 6][0] if k + 6 < len(tpos) else P0 + 12 + k - len(tpos)
        d = (128 + 4*((r*3 + kc) & 1) if ph == 0 else VBC(r, ph, kc)) + 2*(j & 1)
        c = [F(cvt(d + h, ta + 2*h), p, dl) for h in range(2)]
        if ph == 0:
            wchain += c
            if j & 1: wchain.append(F(f"ds_write_b128 v{3*(r == 4)}, {vr('v', d - 2)} offset:{640*kc + 16*(r & 3)}", p, INF, "w0"))
        else: chains.append(c)
    def go(bb):
        stamp(bb, 9)
        bb(f"s_cmp_ge_u32 s82, {NPROD}\ns_cbranch_scc1 L_go")
        snap = (list(bb.hist), bb.t, bb.tm, bb.tds, list(bb.vm))
        bb("s_mov_b32 s83, 0\nL_spin:\ns_waitcnt vmcnt(0)")
        bb(f"v_readfirstlane_b32 s82, v39\ns_cmp_ge_u32 s82, {NPROD}\ns_cbranch_scc1 L_flag\ns_add_u32 s83, s83, 1\ns_cmp_ge_u32 s83, 0x10000\ns_cbranch_scc1 L_flag")
        bb(poll); bb("s_branch L_spin\nL_flag:\ns_mov_b64 s[16:17], s[48:49]"); bb.vm = []
        for f in range(8): bb(uload(f))
        bb("L_go:"); bb.hist, bb.t, bb.tm, bb.tds, bb.vm = snap
        stamp(bb, 10)
        bb.wait_tag("w0"); bb("s_barrier")
        stamp(bb, 11)
    wchain.append(F(go, P0 - 3, P0 - 1, big=True))
    NBR = 8
    breads = [(s_, t) for s_ in range(45 - n) for t in range(7)] + [(s_, t) for t in range(7) for s_ in range(45 - n, 45)]
    BF = lambda k: vr("a", 4*(k % NBR))
    def bread(k):
        s_, t = breads[k]; di, kc = divmod(s_ % 15, 3)
        return f"ds_read_b128 {BF(k)}, v2 offset:{t*NB + 640*kc + 16*di}"
    pos = {}; ACC = (X, Y, Z); lastuse = {}
    tix = lambda a_, t: 4*(t*3 + a_)
    for k, (s_, t) in enumerate(breads):
        ph = s_ // 15
        for a_ in range(3):
            c = vr("v", ACC[ph] + tix(a_, t))
            if s_ % 15 == 0: c = "0" if ph == 0 else vr("v", ACC[ph - 1] + tix(a_, t))
            pos[(s_, a_, t)] = lastuse[3*s_ + a_] = len(mains)
            mains.append(mfma(vr("v", ACC[ph] + tix(a_, t)), AR(3*s_ + a_), BF(k), c))
    S = lambda s_: P0 + 21 * s_
    END = len(mains)
    bar = lambda tag=None: (lambda bb: (bb.wait_tag(tag) if tag else None, bb("s_barrier")))
    for k in range(315):
        p = P0 + 3*k - lead
        if k in (105, 210): wchain += [F(bar("vw"), p - 3, p), F(f"v_add_u32 v2, {RS}, v2", p - 3, p + 1)]
        wchain.append(F(bread(k), max(p, P0 - 3), max(p + 3, min(P0 + k, P0 + 3*k - 1) if k else P0)))
    chains.append(wchain)
    ca = []; u = P0 + 2 - rate
    for f in range(8, 135):
        u += rate
        if f >= NF: u = max(u, lastuse[f - NF])
        p = u + (-(u - P0 + lead)) % 3
        if f % 8 == 0: ca.append(F("v_add_u32 v1, 0x2000, v1", p - 3, p))
        ca.append(F(uload(f), p, min(p + 4, pos[(f // 3, f % 3, 0)] - 12)))
    cw = []
    for ph in (1, 2):
        p = S(15*(ph - 1)) + 16; p += (1 - (p - P0 + lead)) % 3
        if ph == 2: cw += FL(f"v_add_u32 v0, {RS}, v0\nv_add_u32 v3, {RS}, v3", p - 8, p)
        for r in range(5):
            for kc in range(3):
                for d in range(4):
                    cw.append(F(f"ds_write_b32 v{3*(r == 4)}, v{VBC(r, ph, kc)+d} offset:{RS + 640*kc + 16*(r & 3) + 4*d}", p, S(15*ph - 1), "vw")); p += qgap
    ce = FL("s_mul_i32 m0, s3, 21504\ns_xor_b32 s27, s3, 1\ns_mul_i32 s27, s27, 21504\nv_mbcnt_lo_u32_b32 v0, -1, 0\nv_mbcnt_hi_u32_b32 v0, -1, v0\nv_lshl_add_u32 v3, v0, 2, s27", S(29), S(30))
    ce.append(F(bar(), S(30), S(30) + 2))
    cf = []
    p = S(30) + 3; slots = [q for q in range(p, END) if (q - P0 + lead) % 3 != 0]
    for o in range(84):
        t, a_ = divmod(o // 4, 3)
        cf.append(F(f"v_fma_f32 v{Y+o}, 2.0, v{X+o}, -v{Y+o}", max(pos[(30, a_, t)] + 1, slots[o] - 4), slots[o]))
        ce.append(F(f"ds_write_addtid_b32 v{Y+o} offset:{256*o}", slots[o], slots[o] + 6, "ex"))
    ce.append(F(bar("ex"), slots[83] + 3, slots[83] + 8))
    rd = {}
    for o in range(0, 84, 2):
        rd[o] = slots[87 + o // 2]
        ce.append(F(f"ds_read2st64_b32 {vr('v', X + o, 2)}, v3 offset0:{o} offset1:{o+1}", rd[o], rd[o] + 8))
    ci = []
    for t in range(7):
        for a_ in range(3):
            o = tix(a_, t); rdy = rd[o + 2] + 12
            s_ = min(x for x in range(31, 46 - n) if x == 45 - n or pos[(x, a_, t)] - 8 >= rdy)
            lo = max(pos[(s_ - 1, a_, t)] + 3, rdy); hi = pos[(s_, a_, t)] - 2
            assert hi - lo >= 4, (t, a_, lo, hi)
            ci.append([F(f"v_fmac_f32 v{Z+o+e}, s61, v{X+o+e}", lo, hi) for e in range(4)])
    vO, vR, vG, vT = Y, Y + 1, Y + 2, Y + 3
    p = slots[83] + 10; q = S(45 - n) + 3*n - 4
    co = FL(f"""v_and_b32 v{vT}, 15, v0\nv_mul_u32_u24 v{vO}, {OSP}, v{vT}\nv_lshrrev_b32 v{vT}, 4, v0\nv_lshl_add_u32 v{vO}, v{vT}, 3, v{vO}
        s_and_b32 s26, s3, 1\ns_mul_i32 s26, s26, 192\ns_lshr_b32 s27, s3, 1\ns_mul_i32 s27, s27, 96\ns_add_u32 s26, s26, s27\ns_add_u32 s26, s26, {OS0}\nv_add_u32 v{vO}, s26, v{vO}
        v_mul_u32_u24 v{vT}, 43, v0\nv_lshrrev_b32 v{vT}, 10, v{vT}\nv_add_u32 v{vR}, v0, v{vT}\ns_mul_i32 s26, s3, {4*OSP}\ns_add_u32 s26, s26, {OS0}\nv_lshl_add_u32 v{vR}, v{vR}, 4, s26
        v_mul_u32_u24 v{vG}, {43008 - 384}, v{vT}\nv_lshl_add_u32 v{vG}, v0, 4, v{vG}\nv_lshrrev_b32 v{vT}, 1, v{vT}\nv_lshl_add_u32 v{vG}, v{vT}, 30, v{vG}
        s_lshl_b32 s28, s3, 2\ns_add_u32 s28, s28, s24\ns_mul_i32 s28, s28, 43008\ns_add_u32 s28, s28, s25\ns_add_u32 s29, s28, 86016""", p, q)
    cg = []; cst = []
    for t in range(7):
        e = pos[(44, 2, t)]; d = Y + 4 + 6*(t & 1); rr = Y + 16 + 8*(t & 1); sl = OSS*(t % 3); lim = e + 3*n if t < 6 else INF
        cv = lambda a_: [F(cvt(d + 2*a_ + h, Z + tix(a_, t) + 2*h), pos[(44, a_, t)], lim) for h in range(2)]
        wr = lambda a_: F(f"ds_write_b64 v{vO}, {vr('v', d + 2*a_, 2)} offset:{sl + 32*a_}", e, lim, f"o{t}")
        cg += cv(0) + cv(1) + [wr(0)] + cv(2) + [wr(1), wr(2), F(bar(f"o{t}"), e + 12, lim)]
        cg += [F(f"ds_read_b128 {vr('v', rr + 4*h)}, v{vR} offset:{sl + 2*OSP*h}", e + 12, lim) for h in range(2)]
        st_ = [F(f"buffer_store_dwordx4 {vr('v', rr + 4*h)}, v{vG}, s[20:23], s{28+h} offen offset:{384*t} {stf}", lim + 1 + 3*h, lim + 12) for h in range(2)]
        if t < 5: cst += st_
        else:
            for f in st_: f.after = END - 1; f.before = INF
            cg += st_
    for i, q in enumerate((S(1), S(15), S(30), S(45 - n))): marks[q] = lambda bb, i=i: (cstamp(bb, i), rep.append((bb.t, bb.nm)))
    rep = [(b.t, b.nm)]; marks[P0] = lambda bb: rep.append((bb.t, bb.nm)); marks[END - 1] = lambda bb: (rep.append((bb.t, bb.nm)), stamp(bb, 12))
    forced = sched(b, mains, chains + [ca, cw, ce, cf, co, cg, cst] + ci, marks)
    rep.append((b.t, b.nm))
    print("setup", rep[0][0], "sections (cycles, excess):", [(y[0] - x[0], y[0] - x[0] - 16*(y[1] - x[1])) for x, y in zip(rep, rep[1:])], "forced", forced, file=sys.stderr)
    if stamps:
        stamp(b, 14); b("s_waitcnt vmcnt(0)"); stamp(b, 15); stamp_out(b)
    b("L_end:\ns_endpgm")
    b.hist = []; b.reset(); b.lg = [I("s_load_dwordx16 s[36:51], s[0:1], 0")]
    b("L_prod:")
    b("v_lshrrev_b32 v3, 6, v0\nv_and_b32 v0, 63, v0\nv_lshlrev_b32 v1, 4, v0\nv_readfirstlane_b32 s3, v3")
    b("s_lshr_b32 s24, s2, 1\ns_and_b32 s25, s2, 1")
    b(f"s_cmp_eq_u32 s3, 3\ns_cbranch_scc1 L_pf\ns_cmp_ge_u32 s2, {NPROD}\ns_cbranch_scc1 L_end2")
    b("s_mul_i32 s26, s24, 171\ns_lshr_b32 s26, s26, 9\ns_mul_i32 s27, s26, 3\ns_sub_u32 s27, s24, s27")
    b("s_mul_i32 s28, s26, 92160\ns_mul_i32 s27, s27, 6144\ns_add_u32 s28, s28, s27\ns_mul_i32 s27, s25, 3\ns_add_u32 s27, s27, s3\ns_lshl_b32 s27, s27, 5\ns_add_u32 s28, s28, s27")
    b("v_lshrrev_b32 v2, 1, v0\nv_mul_u32_u24 v2, 192, v2\nv_and_b32 v3, 1, v0\nv_lshl_add_u32 v2, v3, 4, v2\nv_add_u32 v72, s28, v2")
    for dj in range(1, 5): b(f"v_add_u32 v{72+dj}, {18432 - 1024*(dj < 4)}, v{71+dj}")
    b("s_mul_i32 s29, s3, 5120\nv_lshl_add_u32 v4, v0, 3, s29\ns_mov_b32 m0, s29")
    b(f"s_mul_i32 s30, s25, {NU//4}\ns_mul_i32 s27, s24, 3072\ns_add_u32 s30, s30, s27\ns_lshl_b32 s27, s3, 10\ns_add_u32 s30, s30, s27\ns_mov_b32 s18, {NU}\ns_mov_b32 s19, 0x20000")
    stamp(b, 1)
    for dj in range(5):
        if dj == 4: b("s_add_u32 m0, s29, 1024")
        b(f"global_load_lds_dwordx4 v{72+dj}, s[42:43] offset:{1024*min(dj, 3)}", f"w{dj}")
    b("s_mov_b32 s16, s48\ns_mov_b32 s17, s49")
    for k in range(2):
        for j in range(5): b(f"s_mov_b32 s{52 + 10*k + 2*j}, {f32(G[xi[k][0]][j]):#x}")
    b(f"s_mov_b32 s72, {f32(G[0][0]):#x}\ns_mov_b32 s74, 0xffff0000")
    assert G[0][0] == G[5][4]
    for k in range(2):
        sg = 1 if k == 0 else -1
        assert all(G[xi[k][1]][j] == sg * (-1)**j * G[xi[k][0]][j] for j in range(5))
    W = lambda dj: 8 + 4*dj
    Fp = lambda dj, d: 32 + 8*dj + 2*d
    for dj in range(5):
        b.wait_tag(f"w{dj}")
        for h in range(2): b(f"ds_read_b64_tr_b16 {vr('v', W(dj) + 2*h, 2)}, v4 offset:{1024*dj + 512*h}")
    stamp(b, 2)
    for dj in range(5):
        for d in range(4): b(f"v_lshlrev_b32 v{Fp(dj, d)}, 16, v{W(dj)+d}\nv_and_b32 v{Fp(dj, d)+1}, s74, v{W(dj)+d}")
    p2 = lambda r: vr("v", r, 2)
    def ust(r, k, ph): b(f"s_add_u32 s31, s30, {k*(NU//2) + ph*46080}\nbuffer_store_dwordx4 {vr('v', r)}, v1, s[16:19], s31 offen sc1")
    for k in range(2):
        E, O, R = 80, 88, 96 + 24*k
        sc_ = lambda j: f"s[{52 + 10*k + 2*j}:{53 + 10*k + 2*j}]"
        for j in range(5):
            t = E if j % 2 == 0 else O
            for d in range(4):
                if j < 2: b(f"v_pk_mul_f32 {p2(t + 2*d)}, {p2(Fp(j, d))}, {sc_(j)} op_sel_hi:[1,0]")
                else: b(f"v_pk_fma_f32 {p2(t + 2*d)}, {p2(Fp(j, d))}, {sc_(j)}, {p2(t + 2*d)} op_sel_hi:[1,0,1]")
        for d in range(4): b(f"v_pk_add_f32 {p2(R + 2*d)}, {p2(E + 2*d)}, {p2(O + 2*d)}")
        for d in range(4): b(cvt(R + 16 + d, R + 2*d))
        ust(R + 16, k, 0)
        n_ = "neg_lo:[0,1] neg_hi:[0,1]" if k == 0 else "neg_lo:[1,0] neg_hi:[1,0]"
        for d in range(4): b(f"v_pk_add_f32 {p2(R + 8 + 2*d)}, {p2(E + 2*d)}, {p2(O + 2*d)} {n_}")
        for d in range(4): b(cvt(R + 20 + d, R + 8 + 2*d))
        ust(R + 20, k, 1)
    for k in range(2):
        if G[0][0] == 1: ust(W(4*k), k, 2)
        else:
            for d in range(4): b(f"v_pk_mul_f32 {p2(80 + 2*d)}, {p2(Fp(4*k, d))}, s[72:73] op_sel_hi:[1,0]")
            for d in range(4): b(cvt(144 + 4*k + d, 80 + 2*d))
            ust(144 + 4*k, k, 2)
    stamp(b, 3)
    b("v_mov_b32 v2, 0\nv_mov_b32 v3, 1\ns_waitcnt vmcnt(0)"); stamp(b, 4); b("s_barrier")
    b("s_cmp_lg_u32 s3, 0\ns_cbranch_scc1 L_pdone")
    b("s_mov_b64 exec, 1\nglobal_atomic_add v2, v3, s[46:47] sc1")
    if stamps: b("s_waitcnt vmcnt(0)"); stamp(b, 5)
    b("L_pdone:")
    stamp_out(b)
    b("L_end2:\ns_endpgm")
    b("L_pf:")
    if cpf:
        b(f"s_getpc_b64 s[4:5]\nL_pc:\ns_sub_u32 s4, s4, L_pc-{KN}\ns_subb_u32 s5, s5, 0\ns_mov_b32 s6, L_pc-{KN}\ns_mov_b32 s7, 0x20000")
        b("s_lshr_b32 s26, s2, 3\ns_lshl_b32 s26, s26, 13\nv_lshlrev_b32 v2, 3, v1\nbuffer_load_dword v3, v2, s[4:7], s26 offen\ns_waitcnt vmcnt(0)")
    b("s_endpgm")
    b.raw(f'''.section .rodata,"a"
.p2align 6
.amdhsa_kernel {KN}
  .amdhsa_next_free_vgpr 512
  .amdhsa_next_free_sgpr 102
  .amdhsa_accum_offset 256
  .amdhsa_group_segment_fixed_size 0
  .amdhsa_kernarg_size 56
  .amdhsa_user_sgpr_count 2
  .amdhsa_user_sgpr_kernarg_segment_ptr 1
  .amdhsa_system_sgpr_workgroup_id_x 1
  .amdhsa_float_denorm_mode_32 3
.end_amdhsa_kernel''')
    print("nops", b.nops, "waits", b.waits, "lines", len(b.out), file=sys.stderr)
    return b.text()

if __name__ == "__main__":
    kw = {}
    for x in sys.argv[2:]:
        k, v = x.split("=", 1)
        kw[k] = Fr(v) if k == "a" else (int(v) if v.lstrip("-").isdigit() else v)
    open(sys.argv[1], "w").write(gen(**kw))
```
